```python
import torch

def _softmax(x, axis=-1):
    return torch.softmax(x, dim=axis)
def _gelu(x):
    return torch.nn.functional.gelu(x, approximate="tanh")
def _silu(x):
    return torch.nn.functional.silu(x)
def _sigmoid(x):
    return torch.sigmoid(x)
def _layernorm(x, axis=-1, eps=1e-5):
    m = x.mean(dim=axis, keepdim=True)
    v = x.var(dim=axis, keepdim=True, unbiased=False)
    return (x - m) / torch.sqrt(v + eps)
def _scatter_add(tgt, idx, src, axis=0):
    return tgt.clone().index_add_(axis, idx, src)
def _segment_sum(src, seg, n):
    out = torch.zeros((n,) + src.shape[1:], dtype=src.dtype)
    return out.index_add_(0, seg, src)
def _pad(x, pw):
    flat = tuple(v for pair in reversed(pw) for v in pair)
    return torch.nn.functional.pad(x, flat)

kernel_name = 'parallel_sum__spectral_gfnet__glu_gated_bilinear__prompt'

def setup_inputs():

    _w = (lambda a: (lambda t: t.to(torch.bfloat16) if t.is_floating_point() else t)(torch.as_tensor(a)))
    def _A_setup():
        B, S, D = 1, 2048, 640
        Df = D // 2 + 1
        return {
            "x": _w((lambda *s: torch.randn(*s, dtype=torch.bfloat16) * 0.05)(B, S, D)),
            "w_r": _w((lambda *s: torch.randn(*s, dtype=torch.bfloat16) * 0.4)(S, Df) * 0.02),
            "w_i": _w((lambda *s: torch.randn(*s, dtype=torch.bfloat16) * 0.4)(S, Df) * 0.02),
        }
    _A_in = _A_setup()

    def _B_setup():
        B, S, D, F = 1, 2048, 640, 1728
        return {
            "x": _w((lambda *s: torch.randn(*s, dtype=torch.bfloat16) * 0.05)(B, S, D)),
            "w_gate": _w((lambda *s: torch.randn(*s, dtype=torch.bfloat16) * 0.2)(D, F) * (D ** -0.5)),
            "w_up": _w((lambda *s: torch.randn(*s, dtype=torch.bfloat16) * 0.2)(D, F) * (D ** -0.5)),
            "w_down": _w((lambda *s: torch.randn(*s, dtype=torch.bfloat16) * 0.2)(F, D) * (F ** -0.5)),
        }
    _B_in = _B_setup()

    return {
        "A_x": _A_in["x"],
        "A_w_r": _A_in["w_r"],
        "A_w_i": _A_in["w_i"],
        "B_x": _B_in["x"],
        "B_w_gate": _B_in["w_gate"],
        "B_w_up": _B_in["w_up"],
        "B_w_down": _B_in["w_down"],
    }

def reference(A_x, A_w_r, A_w_i, B_x, B_w_gate, B_w_up, B_w_down):
    def _A_ref(x, w_r, w_i):
        B, S, D = x.shape
        X = (lambda x, axes=(-2,-1): torch.fft.rfft2(x.float(), dim=axes))(x, axes=(-2, -1))
        W = w_r + 1j * w_i
        X = X * W
        y = (lambda x, s, axes=(-2,-1): torch.fft.irfft2(x, s=s, dim=axes).to(torch.bfloat16))(X, (S, D), axes=(-2, -1))
        return y

    def _B_ref(x, w_gate, w_up, w_down):
        g = torch.einsum("bsd,df->bsf", x, w_gate)
        u = torch.einsum("bsd,df->bsf", x, w_up)
        h = g * u
        return torch.einsum("bsf,fd->bsd", h, w_down)

    x = A_x
    xn = _layernorm(x, axis=-1)
    return x + _A_ref(xn, A_w_r, A_w_i) + _B_ref(xn, B_w_gate, B_w_up, B_w_down)
```

```python
class Asm:
    def __init__(self):
        self.l = []
    def __call__(self, s=""):
        for line in s.split("\n"):
            self.l.append(line)
    def text(self):
        return "\n".join(self.l) + "\n"

def header(launch_lines):
    return "\n".join(launch_lines) + '\n.amdgcn_target "amdgcn-amd-amdhsa--gfx950"\n.text\n'

def kernel_begin(name):
    return f".globl {name}\n.p2align 8\n.type {name},@function\n{name}:\n"

def descriptor(name, vgpr=256, sgpr=102, accum=256, ygrid=False):
    s = f""".amdhsa_kernel {name}
  .amdhsa_next_free_vgpr {vgpr}
  .amdhsa_next_free_sgpr {sgpr}
  .amdhsa_accum_offset {accum}
  .amdhsa_group_segment_fixed_size 0
  .amdhsa_kernarg_size 80
  .amdhsa_user_sgpr_count 2
  .amdhsa_user_sgpr_kernarg_segment_ptr 1
  .amdhsa_system_sgpr_workgroup_id_x 1
"""
    if ygrid:
        s += "  .amdhsa_system_sgpr_workgroup_id_y 1\n"
    s += "  .amdhsa_float_denorm_mode_32 3\n"
    s += ".end_amdhsa_kernel\n"
    return s
```

```python
import sys
from asmlib import *
NAME = "parallel_sum__spectral_gfnet__glu_gated_bilinear__prompt"
HDR = open("cdna_kernels/%s.s.ref" % NAME).read().split("; Override launch")[0]

XN, H_, AR, AI, YR, YI, ZR, ZI = [i << 20 for i in (0, 8, 24, 28, 32, 36, 40, 44)]
KS = 324

def srd(a, s, lo, hi, nbytes, off=0):
    a(f"s_add_u32 s{s}, s{lo}, {off}\ns_addc_u32 s{s+1}, s{hi}, 0\ns_and_b32 s{s+1}, s{s+1}, 0xffff\ns_mov_b32 s{s+2}, {nbytes}\ns_mov_b32 s{s+3}, 0x20000")

def rnd_bf16(a, v, t):
    a(f"v_cvt_pk_bf16_f32 v{v}, v{v}, v{v}\nv_lshlrev_b32 v{v}, 16, v{v}")

def wave_sum(a, v, t):
    for off in (0x041F, 0x081F, 0x101F, 0x201F, 0x401F):
        a(f"ds_swizzle_b32 v{t}, v{v} offset:{off}\ns_waitcnt lgkmcnt(0)\nv_add_f32 v{v}, v{v}, v{t}")
    a(f"v_mov_b32 v{t}, v{v}\ns_nop 1\nv_permlane32_swap_b32 v{t}, v{v}\ns_nop 1\nv_add_f32 v{v}, v{v}, v{t}")

def gen(n_empty=0, noise=0.0, extra_body=""):
    a = Asm()
    L = [f"; @launch kernel=ln_kernel grid=(2048,1,1) block=(64,1,1) lds=0",
         f"; @launch kernel=gu_kernel grid=(14336,1,1) block=(256,1,1) lds=0",
         f"; @launch kernel=rd_kernel grid=(2048,1,1) block=(384,1,1) lds=0",
         f"; @launch kernel=cf_kernel grid=(2048,1,1) block=(384,1,1) lds=0",
         f"; @launch kernel=ci_kernel grid=(2048,1,1) block=(384,1,1) lds=0",
         f"; @launch kernel=fin_kernel grid=(2048,1,1) block=(640,1,1) lds=0"]
    L += [f"; @launch kernel=empty_kernel grid=(256,1,1) block=(256,1,1) lds=0"] * n_empty
    a(HDR + header(L))
    a(kernel_begin("ln_kernel"))
    a("s_cmp_ge_u32 s2, 2048\ns_cbranch_scc1 ln_end")
    a("s_load_dwordx2 s[4:5], s[0:1], 0\ns_load_dwordx2 s[6:7], s[0:1], 72\ns_waitcnt lgkmcnt(0)")
    srd(a, 8, 4, 5, 2048*640*2)
    srd(a, 12, 6, 7, 2048*640*4, XN)
    a("s_mul_i32 s16, s2, 1280\ns_mul_i32 s17, s2, 2560")
    a("v_lshlrev_b32 v1, 2, v0")
    for j in range(5):
        a(f"buffer_load_dword v{10+j}, v1, s[8:11], s16 offen offset:{256*j}")
    a("s_waitcnt vmcnt(0)")
    for j in range(5):
        a(f"v_lshlrev_b32 v{20+2*j}, 16, v{10+j}\nv_and_b32 v{21+2*j}, 0xffff0000, v{10+j}")
    a("v_mov_b32 v2, 0")
    for j in range(10): a(f"v_add_f32 v2, v2, v{20+j}")
    wave_sum(a, 2, 3)
    a("v_mul_f32 v2, 0x3acccccd, v2")
    a("v_mov_b32 v4, 0")
    for j in range(10): a(f"v_sub_f32 v5, v{20+j}, v2\nv_fmac_f32 v4, v5, v5")
    wave_sum(a, 4, 3)
    a("v_mul_f32 v4, 0x3acccccd, v4")
    rnd_bf16(a, 2, 3); rnd_bf16(a, 4, 3)
    a("v_add_f32 v4, 0x3727c5ac, v4")
    rnd_bf16(a, 4, 3)
    a("v_sqrt_f32 v4, v4\ns_nop 0")
    rnd_bf16(a, 4, 3)
    a("v_rcp_f32 v6, v4\ns_nop 0")
    for j in range(10):
        a(f"v_sub_f32 v{20+j}, v{20+j}, v2")
        rnd_bf16(a, 20+j, 3)
        a(f"v_mul_f32 v7, v{20+j}, v6\nv_fma_f32 v8, -v7, v4, v{20+j}\nv_fma_f32 v{20+j}, v8, v6, v7")
        rnd_bf16(a, 20+j, 3)
    a("v_lshlrev_b32 v1, 3, v0")
    for j in range(5):
        a(f"buffer_store_dwordx2 v[{20+2*j}:{21+2*j}], v1, s[12:15], s17 offen offset:{512*j}")
    a("ln_end:\ns_endpgm")
    a(kernel_begin("gu_kernel"))
    a("s_cmp_ge_u32 s2, 14336\ns_cbranch_scc1 gu_end")
    a("s_load_dwordx2 s[4:5], s[0:1], 32\ns_load_dwordx2 s[6:7], s[0:1], 40\ns_load_dwordx2 s[20:21], s[0:1], 72\ns_waitcnt lgkmcnt(0)")
    srd(a, 8, 4, 5, 640*1728*2)
    srd(a, 12, 6, 7, 640*1728*2)
    srd(a, 16, 20, 21, 2048*1728*4, H_)
    a("s_mul_hi_u32 s22, s2, 0x24924925\n")
    a("s_mul_i32 s23, s22, 7\ns_sub_u32 s23, s2, s23\ns_lshl_b32 s23, s23, 8")
    a("v_add_u32 v1, s23, v0")
    a("v_lshlrev_b32 v2, 1, v1")
    a("s_mul_i32 s24, s22, 2560\ns_add_u32 s24, s20, s24\ns_addc_u32 s25, s21, 0")
    a("v_mov_b32 v4, 0\nv_mov_b32 v5, 0\ns_mov_b32 s26, 0\ns_mov_b32 s27, 0")
    a("gu_loop:")
    a("s_load_dwordx8 s[32:39], s[24:25], 0")
    for j in range(8):
        a(f"buffer_load_ushort v{10+j}, v2, s[8:11], s27 offen\nbuffer_load_ushort v{20+j}, v2, s[12:15], s27 offen\ns_add_u32 s27, s27, 3456")
    a("s_waitcnt vmcnt(0) lgkmcnt(0)")
    for j in range(8):
        a(f"v_lshlrev_b32 v{10+j}, 16, v{10+j}\nv_lshlrev_b32 v{20+j}, 16, v{20+j}\nv_fmac_f32 v4, s{32+j}, v{10+j}\nv_fmac_f32 v5, s{32+j}, v{20+j}")
    a("s_add_u32 s24, s24, 32\ns_addc_u32 s25, s25, 0\ns_add_u32 s26, s26, 8\ns_cmp_lt_u32 s26, 640\ns_cbranch_scc1 gu_loop")
    rnd_bf16(a, 4, 3); rnd_bf16(a, 5, 3)
    a("v_mul_f32 v4, v4, v5")
    rnd_bf16(a, 4, 3)
    a("s_mul_i32 s28, s22, 6912")
    a("v_lshlrev_b32 v6, 2, v1\nv_cmp_gt_u32 vcc, 1728, v1\ns_and_saveexec_b64 s[30:31], vcc\ns_cbranch_execz gu_end")
    a("buffer_store_dword v4, v6, s[16:19], s28 offen")
    a("gu_end:\ns_endpgm")
    a(kernel_begin("rd_kernel"))
    a("s_cmp_ge_u32 s2, 2048\ns_cbranch_scc1 rd_end")
    a("s_load_dwordx2 s[20:21], s[0:1], 72\ns_waitcnt lgkmcnt(0)")
    srd(a, 8, 20, 21, 2048*KS*4, AR)
    srd(a, 12, 20, 21, 2048*KS*4, AI)
    a("s_mul_i32 s24, s2, 2560\ns_add_u32 s24, s20, s24\ns_addc_u32 s25, s21, 0")
    a("v_mov_b32 v4, 0\nv_mov_b32 v5, 0\nv_mov_b32 v6, 0\ns_mov_b32 s26, 0")
    a("rd_loop:")
    a("s_load_dwordx8 s[32:39], s[24:25], 0\ns_waitcnt lgkmcnt(0)")
    for j in range(8):
        a("v_cvt_f32_u32 v7, v6\nv_mul_f32 v7, 0x3acccccd, v7\nv_cos_f32 v8, v7\nv_sin_f32 v9, v7")
        a("v_add_u32 v6, v6, v0\nv_subrev_u32 v10, 640, v6\nv_min_u32 v6, v6, v10")
        a(f"v_fmac_f32 v4, s{32+j}, v8\nv_fma_f32 v5, -s{32+j}, v9, v5")
    a("s_add_u32 s24, s24, 32\ns_addc_u32 s25, s25, 0\ns_add_u32 s26, s26, 8\ns_cmp_lt_u32 s26, 640\ns_cbranch_scc1 rd_loop")
    a(f"s_mul_i32 s28, s2, {KS*4}")
    a("v_lshlrev_b32 v11, 2, v0\nv_cmp_ge_u32 vcc, 320, v0\ns_and_saveexec_b64 s[30:31], vcc\ns_cbranch_execz rd_end")
    a("buffer_store_dword v4, v11, s[8:11], s28 offen\nbuffer_store_dword v5, v11, s[12:15], s28 offen")
    a("rd_end:\ns_endpgm")
    for nm, src_r, src_i, dst_r, dst_i, sign, useW in (("cf", AR, AI, YR, YI, -1, True), ("ci", YR, YI, ZR, ZI, +1, False)):
        a(kernel_begin(f"{nm}_kernel"))
        a(f"s_cmp_ge_u32 s2, 2048\ns_cbranch_scc1 {nm}_end")
        a("s_load_dwordx2 s[20:21], s[0:1], 72\ns_load_dwordx2 s[4:5], s[0:1], 8\ns_load_dwordx2 s[6:7], s[0:1], 16\ns_waitcnt lgkmcnt(0)")
        srd(a, 8, 20, 21, 2048*KS*4, src_r)
        srd(a, 12, 20, 21, 2048*KS*4, src_i)
        srd(a, 16, 20, 21, 2048*KS*4, dst_r)
        srd(a, 24, 20, 21, 2048*KS*4, dst_i)
        srd(a, 40, 4, 5, 2048*321*2)
        srd(a, 44, 6, 7, 2048*321*2)
        a("v_lshlrev_b32 v1, 2, v0\nv_mov_b32 v4, 0\nv_mov_b32 v5, 0\ns_mov_b32 s28, 0\ns_mov_b32 s29, 0\ns_mov_b32 s30, 0")
        a(f"{nm}_loop:")
        for j in range(8):
            a(f"buffer_load_dword v{10+j}, v1, s[8:11], s28 offen\nbuffer_load_dword v{20+j}, v1, s[12:15], s28 offen\ns_add_u32 s28, s28, {KS*4}")
        for j in range(8):
            a(f"v_cvt_f32_u32 v{30+j}, s29\ns_add_u32 s29, s29, s2\ns_and_b32 s29, s29, 2047")
            a(f"v_mul_f32 v{30+j}, 0x3a000000, v{30+j}")
            a(f"v_sin_f32 v{40+j}, v{30+j}\nv_cos_f32 v{30+j}, v{30+j}")
        a("s_waitcnt vmcnt(0)")
        for j in range(8):
            c, s_, r, i = 30+j, 40+j, 10+j, 20+j
            if sign < 0:
                a(f"v_fmac_f32 v4, v{r}, v{c}\nv_fmac_f32 v4, v{i}, v{s_}\nv_fmac_f32 v5, v{i}, v{c}\nv_fma_f32 v5, -v{r}, v{s_}, v5")
            else:
                a(f"v_fmac_f32 v4, v{r}, v{c}\nv_fma_f32 v4, -v{i}, v{s_}, v4\nv_fmac_f32 v5, v{i}, v{c}\nv_fmac_f32 v5, v{r}, v{s_}")
        a(f"s_add_u32 s30, s30, 8\ns_cmp_lt_u32 s30, 2048\ns_cbranch_scc1 {nm}_loop")
        if useW:
            a("v_lshlrev_b32 v2, 1, v0\ns_mul_i32 s31, s2, 642")
            a("buffer_load_ushort v6, v2, s[40:43], s31 offen\nbuffer_load_ushort v7, v2, s[44:47], s31 offen\ns_waitcnt vmcnt(0)")
            a("v_lshlrev_b32 v6, 16, v6\nv_lshlrev_b32 v7, 16, v7")
            a("v_mul_f32 v8, v4, v6\nv_fma_f32 v8, -v5, v7, v8\nv_mul_f32 v9, v4, v7\nv_fmac_f32 v9, v5, v6\nv_mov_b32 v4, v8\nv_mov_b32 v5, v9")
        a(f"s_mul_i32 s31, s2, {KS*4}")
        a(f"v_cmp_ge_u32 vcc, 320, v0\ns_and_saveexec_b64 s[34:35], vcc\ns_cbranch_execz {nm}_end")
        a("buffer_store_dword v4, v1, s[16:19], s31 offen\nbuffer_store_dword v5, v1, s[24:27], s31 offen")
        a(f"{nm}_end:\ns_endpgm")
    a(kernel_begin("fin_kernel"))
    a("s_cmp_ge_u32 s2, 2048\ns_cbranch_scc1 fin_end")
    a("s_load_dwordx2 s[20:21], s[0:1], 72\ns_load_dwordx2 s[4:5], s[0:1], 0\ns_load_dwordx2 s[6:7], s[0:1], 48\ns_load_dwordx2 s[22:23], s[0:1], 56\ns_waitcnt lgkmcnt(0)")
    srd(a, 8, 4, 5, 2048*640*2)
    srd(a, 12, 6, 7, 1728*640*2)
    srd(a, 16, 22, 23, 2048*640*2)
    a(f"s_mul_i32 s24, s2, {KS*4}\ns_add_u32 s26, s24, {ZI}\ns_add_u32 s24, s24, {ZR}")
    a("s_add_u32 s24, s20, s24\ns_addc_u32 s25, s21, 0\ns_add_u32 s26, s20, s26\ns_addc_u32 s27, s21, 0")
    a("v_mov_b32 v4, 0\nv_mov_b32 v6, 0\ns_mov_b32 s28, 0")
    a("fin_l1:")
    a("s_load_dwordx4 s[32:35], s[24:25], 0\ns_load_dwordx4 s[36:39], s[26:27], 0\ns_waitcnt lgkmcnt(0)")
    for j in range(4):
        a(f"s_add_u32 s29, s28, {j}")
        a(f"s_cmp_eq_u32 s29, 0\ns_cselect_b32 s30, 1, 0\ns_cmp_eq_u32 s29, 320\ns_cselect_b32 s30, 1, s30")
        a(f"s_cmp_eq_u32 s30, 1\ns_cselect_b32 s{36+j}, 0, s{36+j}\ns_cselect_b32 s31, 1.0, 2.0")
        a(f"s_cmp_gt_u32 s29, 320\ns_cselect_b32 s31, 0, s31\ns_cselect_b32 s{32+j}, 0, s{32+j}\ns_cselect_b32 s{36+j}, 0, s{36+j}")
        a("v_cvt_f32_u32 v7, v6\nv_mul_f32 v7, 0x3acccccd, v7\nv_cos_f32 v8, v7\nv_sin_f32 v9, v7")
        a("v_add_u32 v6, v6, v0\nv_subrev_u32 v10, 640, v6\nv_min_u32 v6, v6, v10")
        a(f"v_mul_f32 v8, s{32+j}, v8\nv_fma_f32 v8, -s{36+j}, v9, v8\nv_fmac_f32 v4, s31, v8")
    a("s_add_u32 s24, s24, 16\ns_addc_u32 s25, s25, 0\ns_add_u32 s26, s26, 16\ns_addc_u32 s27, s27, 0\ns_add_u32 s28, s28, 4\ns_cmp_lt_u32 s28, 324\ns_cbranch_scc1 fin_l1")
    a("v_mul_f32 v4, 0x354ccccd, v4")
    rnd_bf16(a, 4, 3)
    a(f"s_mul_i32 s24, s2, 6912\ns_add_u32 s24, s24, {H_}\ns_add_u32 s24, s20, s24\ns_addc_u32 s25, s21, 0")
    a("v_lshlrev_b32 v2, 1, v0\nv_mov_b32 v5, 0\ns_mov_b32 s28, 0\ns_mov_b32 s29, 0")
    a("fin_l2:")
    a("s_load_dwordx8 s[32:39], s[24:25], 0")
    for j in range(8):
        a(f"buffer_load_ushort v{10+j}, v2, s[12:15], s29 offen\ns_add_u32 s29, s29, 1280")
    a("s_waitcnt vmcnt(0) lgkmcnt(0)")
    for j in range(8):
        a(f"v_lshlrev_b32 v{10+j}, 16, v{10+j}\nv_fmac_f32 v5, s{32+j}, v{10+j}")
    a("s_add_u32 s24, s24, 32\ns_addc_u32 s25, s25, 0\ns_add_u32 s28, s28, 8\ns_cmp_lt_u32 s28, 1728\ns_cbranch_scc1 fin_l2")
    rnd_bf16(a, 5, 3)
    a("s_mul_i32 s30, s2, 1280")
    a("buffer_load_ushort v7, v2, s[8:11], s30 offen\ns_waitcnt vmcnt(0)\nv_lshlrev_b32 v7, 16, v7")
    a("v_add_f32 v7, v7, v4")
    rnd_bf16(a, 7, 3)
    a("v_add_f32 v7, v7, v5")
    if extra_body: a(extra_body)
    a("v_cvt_pk_bf16_f32 v7, v7, v7")
    a("buffer_store_short v7, v2, s[16:19], s30 offen")
    a("fin_end:\ns_endpgm")
    if n_empty:
        a(kernel_begin("empty_kernel"))
        a("s_endpgm")
    a('.section .rodata,"a"')
    for k in ["ln", "gu", "rd", "cf", "ci", "fin"] + (["empty"] if n_empty else []):
        a(".p2align 6")
        a(descriptor(f"{k}_kernel", vgpr=64, accum=64))
    return a.text()

if __name__ == "__main__":
    open("naive0.s", "w").write(gen(0))
    open("naive500.s", "w").write(gen(500))
```

```python
NAME = "parallel_sum__spectral_gfnet__glu_gated_bilinear__prompt"
S, D, F = 2048, 640, 1728

WS_STAT = 0x0
WS_CPART = 0x10000
WS_FLAG = 0x40000
WS_H = 0x100000
WS_AT = 0x900000
WS_WT = 0xC00000
WS_WB = 0xF00000
WS_ZT = 0x1300000
WS_SIZE = 0x1600000

INV640 = "0x3acccccd"

def f2h(x):
    import struct
    return hex(struct.unpack("<I", struct.pack("<f", x))[0])

def srd(s, dst, lo, nbytes):
    s(f"s_mov_b32 s{dst}, s{lo}\ns_and_b32 s{dst+1}, s{lo+1}, 0xffff\ns_mov_b32 s{dst+2}, {nbytes}\ns_mov_b32 s{dst+3}, 0x20000")

def descriptor(name, vgpr=256, sgpr=102):
    return f""".p2align 6
.amdhsa_kernel {name}
  .amdhsa_next_free_vgpr {vgpr}
  .amdhsa_next_free_sgpr {sgpr}
  .amdhsa_accum_offset {min(256, (vgpr + 3) // 4 * 4)}
  .amdhsa_group_segment_fixed_size 0
  .amdhsa_kernarg_size 80
  .amdhsa_user_sgpr_count 2
  .amdhsa_user_sgpr_kernarg_segment_ptr 1
  .amdhsa_system_sgpr_workgroup_id_x 1
  .amdhsa_float_denorm_mode_32 3
.end_amdhsa_kernel
"""
```

```python
import re

class Op:
    __slots__ = ("text", "kind", "tag")
    def __init__(self, text, kind, tag=None):
        self.text, self.kind, self.tag = text, kind, tag
    def __repr__(self): return f"Op({self.text!r},{self.kind},{self.tag})"

def kind_of(text):
    m = text.split()[0]
    if m.startswith("v_mfma"): return "mfma"
    if m.startswith(("buffer_", "global_")): return "vm"
    if m.startswith("ds_"): return "ds"
    if m.startswith("v_"): return "valu"
    if m.startswith("s_"): return "salu"
    return "other"

class Stream(list):
    def __call__(self, text, tag=None):
        for line in text.split("\n"):
            line = line.strip()
            if not line: continue
            self.append(Op(line, "label" if line.endswith(":") else kind_of(line), tag))
        return self
    def wait_vm(self, tag): self.append(Op("", "wait_vm", tag)); return self
    def wait_ds(self, tag): self.append(Op("", "wait_ds", tag)); return self
    def raw(self, text): self.append(Op(text, "raw")); return self
    def group(self, sub):
        self.append(Op("", "group", list(sub))); return self

def flatten(ops):
    out = Stream()
    for op in ops:
        if op.kind == "group": out.extend(flatten(op.tag))
        else: out.append(op)
    return out

def interleave(main, fill, per=1, start=0, kinds=("mfma",)):
    out = Stream(); fi = 0; n = 0
    for op in main:
        out.append(op)
        if op.kind in kinds:
            if n >= start:
                k = per(n) if callable(per) else per
                for _ in range(k):
                    if fi < len(fill):
                        out.append(fill[fi]); fi += 1
                        while out[-1].kind in ("wait_vm", "wait_ds") and fi < len(fill):
                            out.append(fill[fi]); fi += 1
            n += 1
    out.extend(fill[fi:])
    return out

class Resolver:
    def __init__(self):
        self.vm_n = 0; self.ds_n = 0; self.vm_tag = {}; self.ds_tag = {}
        self.vm_done = 0; self.ds_done = 0
    def resolve(self, ops):
        out = []
        for op in ops:
            if op.kind == "vm":
                self.vm_n += 1
                if op.tag is not None: self.vm_tag[op.tag] = self.vm_n
                out.append(op.text)
            elif op.kind == "ds":
                self.ds_n += 1
                if op.tag is not None: self.ds_tag[op.tag] = self.ds_n
                out.append(op.text)
            elif op.kind == "wait_vm":
                idx = self.vm_n if op.tag == "all" else self.vm_tag[op.tag]
                if idx > self.vm_done:
                    n = min(self.vm_n - idx, 63)
                    out.append(f"s_waitcnt vmcnt({n})")
                    self.vm_done = self.vm_n - n
            elif op.kind == "wait_ds":
                idx = self.ds_n if op.tag == "all" else self.ds_tag[op.tag]
                if idx > self.ds_done:
                    n = min(self.ds_n - idx, 15)
                    out.append(f"s_waitcnt lgkmcnt({n})")
                    self.ds_done = self.ds_n - n
            elif op.kind in ("raw", "optvm"):
                out.append(op.text)
            else:
                out.append(op.text)
                if op.text.startswith("s_waitcnt"):
                    m = re.search(r"vmcnt\((\d+)\)", op.text)
                    if m: self.vm_done = max(self.vm_done, self.vm_n - int(m.group(1)))
                    m = re.search(r"lgkmcnt\((\d+)\)", op.text)
                    if m: self.ds_done = max(self.ds_done, self.ds_n - int(m.group(1)))
        return out

_REG = re.compile(r"(?<![\w.])(-?\|?)(v|s|a)(\d+|\[(\d+):(\d+)\])")
TRANS = ("v_exp_f32", "v_log_f32", "v_rcp_f32", "v_rsq_f32", "v_sqrt_f32", "v_sin_f32", "v_cos_f32", "v_rcp_iflag_f32")

def regs(tok):
    tok = tok.strip()
    out = set()
    for m in _REG.finditer(tok):
        c = m.group(2)
        if m.group(4) is not None:
            out |= {(c, i) for i in range(int(m.group(4)), int(m.group(5)) + 1)}
        else:
            out.add((c, int(m.group(3))))
    if re.search(r"\bvcc\b", tok): out |= {("s", "vcc")}
    if re.search(r"\bexec\b", tok): out |= {("s", "exec")}
    if re.search(r"\bm0\b", tok): out |= {("s", "m0")}
    return out

NO_DST = ("s_waitcnt", "s_barrier", "s_nop", "s_cbranch", "s_branch", "s_endpgm", "s_setprio", "s_sleep", "s_cmp", "s_bitcmp")

def parse(text):
    t = text.split(";")[0].strip()
    parts = t.split(None, 1)
    mn = parts[0]
    ops = [o.strip() for o in re.split(r",(?![^\[]*\])", parts[1])] if len(parts) > 1 else []
    if mn.startswith(NO_DST): return mn, set(), set().union(*[regs(o) for o in ops]) if ops else set()
    if mn.startswith(("buffer_store", "global_store", "ds_write", "ds_add", "buffer_atomic", "global_atomic")):
        src = set().union(*[regs(o) for o in ops])
        return mn, set(), src
    if mn.startswith(("buffer_load", "global_load")) and re.search(r"\blds\b", t):
        return mn, set(), set().union(*[regs(o) for o in ops]) | {("s", "m0")}
    dst = regs(ops[0]) if ops else set()
    src = set().union(*[regs(o) for o in ops[1:]]) if len(ops) > 1 else set()
    if mn.startswith("v_cmp") and not mn.startswith("v_cmpx"):
        pass
    if mn.startswith(("v_add_co", "v_sub_co", "v_addc_co", "v_subb_co")):
        dst |= regs(ops[1]); src = set().union(*[regs(o) for o in ops[2:]])
    if mn.startswith(("v_fmac", "v_dot2c", "v_pk_fmac")): src |= dst
    if mn.startswith("v_permlane") and "swap" in mn:
        dst |= regs(ops[1]); src |= regs(ops[0])
    if mn.startswith("v_cndmask") and len(ops) == 3: src |= {("s", "vcc")}
    if mn.endswith("_dpp") or "row_" in t or "quad_perm" in t: src |= dst if "bound_ctrl" not in t else set()
    if mn.startswith(("v_writelane",)): src |= dst
    if mn.startswith("s_and_saveexec") or mn.startswith("s_or_saveexec"): dst |= {("s", "exec")}; src |= {("s", "exec")}
    return mn, dst, src

def is_valu(mn): return mn.startswith("v_") and not mn.startswith("v_mfma")
def is_vmem(mn): return mn.startswith(("buffer_", "global_"))
def is_ds(mn): return mn.startswith("ds_")
def mfma_passes(mn): return 8 if "32x32x16" in mn else 4

def states(text):
    m = re.match(r"s_nop\s+(\d+)", text)
    return int(m.group(1)) + 1 if m else 1

def pad_hazards(lines, lookback=24):
    out = []; hist = []
    added = 0
    for text in lines:
        s = text.split(";")[0].strip()
        if not s or s.endswith(":") or s.startswith("."):
            out.append(text); continue
        mn, dst, src = parse(s)
        need = 0
        dist = 0
        isdpp = ("row_" in s or "quad_perm" in s or mn.endswith("_dpp"))
        ops_split = [o.strip() for o in re.split(r",(?![^\[]*\])", s.split(None, 1)[1])] if " " in s else []
        for (pmn, pdst, psrc, ptext, pops) in reversed(hist):
            if dist >= lookback: break
            req = 0
            if is_valu(pmn):
                vd = {r for r in pdst if r[0] == "v"}; sd = {r for r in pdst if r[0] == "s"}
                if mn.startswith("v_mfma") and vd & src: req = max(req, 2)
                if mn.startswith(("v_readlane", "v_readfirstlane")) and vd & src: req = max(req, 1)
                if isdpp and vd & src: req = max(req, 2)
                if mn.startswith("v_permlane") and vd & src: req = max(req, 2)
                if pmn.startswith(TRANS) and is_valu(mn) and vd & src: req = max(req, 1)
                if sd & src:
                    if is_vmem(mn): req = max(req, 5)
                    elif mn.startswith(("v_readlane", "v_writelane")): req = max(req, 4)
                    elif is_valu(mn) or mn.startswith("v_mfma"): req = max(req, 2)
                    elif mn.startswith("s_"): req = max(req, 1)
                if ("s", "exec") in pdst:
                    if isdpp: req = max(req, 5)
                    if mn.startswith("v_mfma") or mn.startswith(("v_readlane", "v_readfirstlane", "v_permlane")): req = max(req, 4)
            if pmn.startswith("v_mfma"):
                p = mfma_passes(pmn)
                far = {4: 8, 8: 12}[p]
                if mn.startswith("v_mfma"):
                    cdst = regs(ops_split[0]); ca = regs(ops_split[1]) | regs(ops_split[2]); cc = regs(ops_split[3])
                    if pdst & ca: req = max(req, far)
                    if pdst & cc and not (pdst == cc and mfma_passes(mn) == p): req = max(req, {4: 6, 8: 10}[p])
                    if pdst & cdst and not (pdst == cdst): req = max(req, {4: 6, 8: 10}[p])
                else:
                    if pdst & (src | dst): req = max(req, far)
                    pc = regs(pops[3])
                    if is_valu(mn) and pc & dst: req = max(req, {4: 3, 8: 7}[p])
            if is_vmem(pmn) and re.search(r"store_dwordx[34]", pmn):
                data = regs(pops[0])
                if data & dst: req = max(req, 2 if is_valu(mn) else 1)
            if pmn.startswith("s_") and ("s", "m0") in pdst and ("s", "m0") in src and (is_vmem(mn) or is_ds(mn)): req = max(req, 1)
            if req > dist: need = max(need, req - dist)
            dist += states(ptext)
        while need > 0:
            k = min(need, 16)
            out.append(f"s_nop {k-1}"); hist.append(("s_nop", set(), set(), f"s_nop {k-1}", [])); need -= k; added += 1
        out.append(text)
        hist.append((mn, dst, src, s, ops_split))
        if len(hist) > 64: hist = hist[-48:]
    return out, added

def merge(main, fills, front=True):
    n = sum(1 for o in main if o.kind == "mfma")
    units = []
    for f in fills:
        u = []; cur = []
        for op in f:
            cur.append(op)
            if op.kind in ("wait_vm", "wait_ds"): continue
            u.append(cur); cur = []
        if cur: u.append(cur)
        units.append(u)
    out = Stream()
    pos = [0] * len(units)
    k = 0
    for op in main:
        out.append(op)
        if op.kind != "mfma": continue
        k += 1
        for i, u in enumerate(units):
            span = max(1, (3 * n) // 4) if (i == 0 and front) else n
            tgt = min(len(u), -(-len(u) * k // span))
            while pos[i] < tgt:
                out.extend(u[pos[i]]); pos[i] += 1
    for i, u in enumerate(units):
        while pos[i] < len(u): out.extend(u[pos[i]]); pos[i] += 1
    return out


def finish(stream):
    lines = Resolver().resolve(flatten(stream))
    lines, added = pad_hazards(lines)
    return lines
```

```python
from emit import *
from common import *

SEQ = [0, 5, 1, 6, 2, 7, 3, 8, 4, 9]

sX, sWG, sWU, sWS, sWD, sWR, sWI, sDBG = 8, 12, 16, 20, 24, 28, 32, 36
sW, sMI, sNI, sWM, sWN = 40, 41, 42, 43, 44
sAI = 45
sALDS, sBLDS, sT0, sT1, sT2, sT3 = 49, 50, 52, 53, 54, 55
sBK = 51
sGW = 76
sMASK = 78
vL = 1
vA0, vA1, vA0h, vA1h, vB0, vB1, vGA0, vGA1, vGB = 10, 11, 12, 13, 14, 15, 16, 17, 18
SET = [20, 52]
ACC = 128
LDS_B = 98304
LDS_ST = 147456
LDS_COL = LDS_ST + 2048
LDS_CP = LDS_ST + 4096
LDS_BYTES = LDS_ST + 8192

STAMPS = False
WS_STAMP = 0x1590000
def stamp(s, i):
    if STAMPS: s(f"s_memrealtime s[{84+2*i}:{85+2*i}]")
def stamp_out(s, n):
    if not STAMPS: return
    s("s_waitcnt vmcnt(0)"); stamp(s, n - 1); s("s_waitcnt lgkmcnt(0)")
    s(f"s_lshl_b32 s{sT1}, s2, 3\ns_add_u32 s{sT1}, s{sT1}, s{sW}\ns_lshl_b32 s{sT1}, s{sT1}, 5\ns_add_u32 s{sT1}, s{sT1}, {WS_STAMP}")
    for i in range(n): s(f"v_mov_b32 v{20+i}, s{84+2*i}")
    s("s_mov_b64 exec, 1")
    s(f"buffer_store_dwordx4 v[20:23], off, s[{sWS}:{sWS+3}], s{sT1}")
    s(f"buffer_store_dwordx4 v[24:27], off, s[{sWS}:{sWS+3}], s{sT1} offset:16")

def head():
    s = Stream()
    if STAMPS: s("s_memrealtime s[84:85]")
    s("s_cmp_ge_u32 s2, 256\ns_cbranch_scc1 K1_END")
    s("s_load_dwordx4 s[56:59], s[0:1], 0\ns_load_dwordx2 s[60:61], s[0:1], 16\ns_load_dwordx4 s[64:67], s[0:1], 32")
    s("s_load_dwordx2 s[68:69], s[0:1], 48\ns_load_dwordx4 s[72:75], s[0:1], 64")
    s(f"v_and_b32 v{vL}, 63, v0\nv_lshrrev_b32 v2, 6, v0")
    s("s_and_b32 s3, s2, 7\ns_lshr_b32 s4, s2, 3")
    s(f"v_readfirstlane_b32 s{sW}, v2")
    s(f"s_and_b32 s5, s3, 1\ns_lshl_b32 s5, s5, 2\ns_and_b32 s6, s4, 3\ns_add_u32 s{sMI}, s5, s6")
    s(f"s_lshr_b32 s5, s3, 1\ns_lshl_b32 s5, s5, 3\ns_lshr_b32 s6, s4, 2\ns_add_u32 s{sNI}, s5, s6")
    s(f"s_lshr_b32 s{sWM}, s{sW}, 1\ns_and_b32 s{sWN}, s{sW}, 1")
    s(f"s_lshl_b32 s{sALDS}, s{sW}, 12")
    s(f"s_lshl_b32 s{sBLDS}, s{sW}, 10\ns_add_u32 s{sBLDS}, s{sBLDS}, {LDS_B}")
    s("s_waitcnt lgkmcnt(0)")
    if STAMPS: s("s_memrealtime s[86:87]")
    srd(s, sX, 56, S * D * 2)
    srd(s, sWR, 58, S * 321 * 2)
    srd(s, sWI, 60, S * 321 * 2)
    srd(s, sWG, 64, D * F * 2)
    srd(s, sWU, 66, D * F * 2)
    srd(s, sWD, 68, F * D * 2)
    srd(s, sDBG, 72, 256)
    srd(s, sWS, 74, WS_SIZE)
    return s

def lds_addr_setup(dft):
    s = Stream()
    s(f"v_and_b32 v2, 15, v{vL}\nv_lshrrev_b32 v3, 4, v{vL}")
    s(f"v_lshrrev_b32 v4, 1, v2\nv_xor_b32 v4, v4, v3\nv_lshlrev_b32 v4, 4, v4")
    s(f"s_lshl_b32 s{sT0}, s{sWM}, 13")
    s(f"v_lshl_add_u32 v4, v2, 7, v4\nv_add_u32 v{vA0}, s{sT0}, v4\nv_xor_b32 v{vA1}, 64, v{vA0}")
    s(f"v_add_u32 v{vA0h}, 0x10000, v{vA0}\nv_add_u32 v{vA1h}, 0x10000, v{vA1}")
    if not dft:
        s(f"v_lshrrev_b32 v4, 2, v2\nv_lshl_add_u32 v4, v3, 3, v4")
        s(f"v_bfe_u32 v5, v{vL}, 3, 1\nv_and_b32 v6, 1, v3\nv_lshl_or_b32 v5, v6, 1, v5")
        s(f"s_lshl_b32 s{sT0}, s{sWN}, 1\nv_xor_b32 v5, s{sT0}, v5")
        s(f"v_lshlrev_b32 v5, 5, v5\nv_lshl_add_u32 v4, v4, 7, v5")
        s(f"v_and_b32 v6, 3, v2\nv_lshl_add_u32 v4, v6, 3, v4")
        s(f"v_add_u32 v{vB0}, {LDS_B}, v4\nv_xor_b32 v{vB1}, 32, v{vB0}")
    else:
        s(f"s_lshl_b32 s{sT0}, s{sWN}, 11\ns_add_u32 s{sT0}, s{sT0}, {LDS_B}")
        s(f"v_lshlrev_b32 v4, 4, v{vL}\nv_add_u32 v{vB0}, s{sT0}, v4")
    return s

def dma_addr_setup(dft):
    s = Stream()
    s(f"v_and_b32 v2, 7, v{vL}\nv_lshrrev_b32 v3, 4, v{vL}\nv_xor_b32 v2, v2, v3\nv_lshlrev_b32 v2, 4, v2")
    if not dft:
        s(f"v_lshrrev_b32 v4, 3, v{vL}\nv_mul_u32_u24 v4, 1280, v4\nv_add_u32 v{vGA0}, v4, v2")
        s(f"s_lshl_b32 s{sT0}, s{sMI}, 8\ns_lshl_b32 s{sT1}, s{sW}, 5\ns_add_u32 s{sT0}, s{sT0}, s{sT1}\ns_mul_i32 s{sAI}, s{sT0}, 1280")
        for i in range(1, 4): s(f"s_add_u32 s{sAI+i}, s{sAI}, {8*i*1280}")
        s(f"v_bfe_u32 v4, v{vL}, 4, 1\ns_and_b32 s{sT0}, s{sW}, 1\ns_lshl_b32 s{sT0}, s{sT0}, 1\nv_or_b32 v4, s{sT0}, v4")
        s(f"v_lshlrev_b32 v4, 1, v4\nv_and_b32 v5, 7, v{vL}\nv_xor_b32 v4, v4, v5\nv_lshlrev_b32 v4, 4, v4")
        s(f"v_lshrrev_b32 v5, 3, v{vL}\ns_lshl_b32 s{sT0}, s{sW}, 3\nv_add_u32 v5, s{sT0}, v5\nv_mul_u32_u24 v5, 3456, v5")
        s(f"s_lshl_b32 s{sT0}, s{sNI}, 7\nv_add3_u32 v{vGB}, v5, v4, s{sT0}")
    else:
        s(f"v_bfe_u32 v4, v{vL}, 3, 2\nv_lshlrev_b32 v4, 6, v4\nv_lshrrev_b32 v5, 5, v{vL}\nv_add_u32 v4, v4, v5")
        s(f"v_mul_u32_u24 v4, 1280, v4\nv_add_u32 v{vGA0}, v4, v2")
        s(f"s_and_b32 s{sT0}, s{sMI}, 1\ns_lshl_b32 s{sT0}, s{sT0}, 5")
        s(f"s_bfe_u32 s{sT1}, s{sMI}, 0x10001\ns_lshl_b32 s{sT1}, s{sT1}, 8\ns_add_u32 s{sT0}, s{sT0}, s{sT1}")
        s(f"s_lshr_b32 s{sT1}, s{sMI}, 2\ns_lshl_b32 s{sT1}, s{sT1}, 10\ns_add_u32 s{sT0}, s{sT0}, s{sT1}")
        s(f"s_lshl_b32 s{sT1}, s{sWM}, 3\ns_add_u32 s{sT0}, s{sT0}, s{sT1}\ns_lshl_b32 s{sT1}, s{sWN}, 2\ns_add_u32 s{sT0}, s{sT0}, s{sT1}")
        s(f"s_mul_i32 s{sAI}, s{sT0}, 1280")
        for i in range(1, 4): s(f"s_add_u32 s{sAI+i}, s{sAI}, {(512*(i>>1) + 2*(i&1))*1280}")
    s(f"v_xor_b32 v{vGA1}, 64, v{vGA0}")
    return s

def dma_stage(b, dft):
    kb = SEQ[b]; sg = b % 3
    groups = []
    for i in range(4):
        g = Stream()
        g(f"s_add_u32 m0, s{sALDS}, {sg*32768 + i*1024}\ns_add_u32 s{sT0}, s{sAI+i}, {kb*128}")
        g(f"buffer_load_dwordx4 v{vGA0 + (i&1)}, s[{sX}:{sX+3}], s{sT0} offen lds", tag=f"stage{b}")
        groups.append(g)
    if not dft:
        for mat, srdn in ((0, sWG), (1, sWU)):
            g = Stream()
            g(f"s_add_u32 m0, s{sBLDS}, {sg*16384 + mat*8192}\ns_mov_b32 s{sT0}, {kb*64*3456}")
            g(f"buffer_load_dwordx4 v{vGB}, s[{srdn}:{srdn+3}], s{sT0} offen lds", tag=f"stage{b}")
            groups.append(g)
    return groups

def frag_reads(u, dft):
    b, ks = u >> 1, u & 1
    sg = b % 3; st = SET[u & 1]
    s = Stream()
    va = (vA0, vA1)[ks] if sg < 2 else (vA0h, vA1h)[ks]
    aoff = (sg % 2) * 32768 if sg < 2 else 0
    A = [f"ds_read_b128 v[{st+4*mt}:{st+4*mt+3}], v{va} offset:{aoff + mt*2048}" for mt in range(4)]
    B = []
    if not dft:
        for mat in range(2):
            for a in range(2):
                r = st + 16 + 4 * (2 * mat + a)
                for jh in range(2):
                    B.append(f"ds_read_b64_tr_b16 v[{r+2*jh}:{r+2*jh+1}], v{vB0 + a} offset:{sg*16384 + mat*8192 + ks*4096 + jh*512}")
    else:
        buf = (b >> 1) & 1
        for nt in range(4):
            part, gk = nt >> 1, nt & 1
            r = st + 16 + 4 * nt
            B.append(f"ds_read_b128 v[{r}:{r+3}], v{vB0} offset:{buf*16384 + ks*8192 + part*4096 + gk*1024}")
    order = []
    if not dft:
        order = [A[0], B[0], B[1], A[1], B[2], B[3], A[2], B[4], B[5], A[3], B[6], B[7]]
    else:
        order = [A[0], B[0], A[1], B[1], A[2], B[2], A[3], B[3]]
    for t in order: s(t, tag=f"rd{u}")
    return s

def mfmas(u, dft):
    st = SET[u & 1]
    s = Stream()
    hi = dft and SEQ[u >> 1] >= 5
    pairs = sorted([(mt, nt) for mt in range(4) for nt in range(4)], key=lambda p: (max(p), p[0] + p[1]))
    for mt, nt in pairs:
        if not dft:
            acc = ACC + 32 * (nt >> 1) + 4 * (2 * mt + (nt & 1))
            s(f"v_mfma_f32_16x16x32_bf16 v[{acc}:{acc+3}], v[{st+16+4*nt}:{st+19+4*nt}], v[{st+4*mt}:{st+4*mt+3}], v[{acc}:{acc+3}]")
        else:
            acc = ACC + (64 if hi else 0) + 4 * (4 * mt + nt)
            s(f"v_mfma_f32_16x16x32_bf16 v[{acc}:{acc+3}], v[{st+4*mt}:{st+4*mt+3}], v[{st+16+4*nt}:{st+19+4*nt}], v[{acc}:{acc+3}]")
    return s

def stats_loads(dft):
    s = Stream()
    s(f"s_lshl_b32 s{sT1}, s{sMI}, 8\ns_lshl_b32 s{sT2}, s{sNI}, 3\ns_add_u32 s{sT1}, s{sT1}, s{sT2}\ns_add_u32 s{sT1}, s{sT1}, s{sW}")
    s(f"s_mul_i32 s{sT2}, s{sT1}, 1280\ns_lshl_b32 s77, s{sT1}, 3")
    s(f"v_lshlrev_b32 v2, 4, v{vL}\nv_lshlrev_b32 v3, 2, v{vL}")
    s(f"buffer_load_dwordx4 v[116:119], v2, s[{sX}:{sX+3}], s{sT2} offen", tag="rowld")
    s(f"buffer_load_dword v120, v3, s[{sX}:{sX+3}], s{sT2} offen offset:1024", tag="rowld")
    if not dft:
        s(f"v_lshrrev_b32 v4, 5, v{vL}\nv_mul_u32_u24 v4, 3456, v4\nv_and_b32 v5, 31, v{vL}\nv_lshl_add_u32 v4, v5, 2, v4")
        s(f"s_mul_i32 s{sT2}, s{sMI}, 80\ns_mul_i32 s{sT3}, s{sW}, 10\ns_add_u32 s{sT2}, s{sT2}, s{sT3}\ns_mul_i32 s{sT2}, s{sT2}, 3456")
        s(f"s_lshl_b32 s{sT3}, s{sNI}, 7\ns_add_u32 s{sT2}, s{sT2}, s{sT3}")
        for i in range(5):
            s(f"buffer_load_dword v{92+i}, v4, s[{sWG}:{sWG+3}], s{sT2} offen", tag="colld")
            s(f"buffer_load_dword v{97+i}, v4, s[{sWU}:{sWU+3}], s{sT2} offen", tag="colld")
            if i < 4: s(f"s_add_u32 s{sT2}, s{sT2}, {2*3456}")
    return s

def stats_compute(dft):
    s = Stream()
    s.wait_vm("rowld")
    stamp(s, 3)
    s("v_mov_b32 v122, 0\nv_mov_b32 v123, 0")
    for r in range(116, 121):
        s(f"v_lshlrev_b32 v2, 16, v{r}\nv_and_b32 v3, 0xffff0000, v{r}")
        s("v_add_f32 v122, v122, v2\nv_fmac_f32 v123, v2, v2\nv_add_f32 v122, v122, v3\nv_fmac_f32 v123, v3, v3")
    for ctl in ("row_shr:1 row_mask:0xf bank_mask:0xf bound_ctrl:0", "row_shr:2 row_mask:0xf bank_mask:0xf bound_ctrl:0",
                "row_shr:4 row_mask:0xf bank_mask:0xf bound_ctrl:0", "row_shr:8 row_mask:0xf bank_mask:0xf bound_ctrl:0",
                "row_bcast:15 row_mask:0xa bank_mask:0xf", "row_bcast:31 row_mask:0xc bank_mask:0xf"):
        s(f"v_add_f32_dpp v122, v122, v122 {ctl}\nv_add_f32_dpp v123, v123, v123 {ctl}")
    s(f"v_mul_f32 v122, {INV640}, v122\nv_mul_f32 v123, {INV640}, v123")
    s("v_fma_f32 v123, -v122, v122, v123\nv_max_f32 v123, 0, v123")
    s("v_cvt_pk_bf16_f32 v122, v122, v123\nv_and_b32 v123, 0xffff0000, v122\nv_lshlrev_b32 v122, 16, v122")
    s("v_add_f32 v123, 0x3727c5ac, v123\nv_cvt_pk_bf16_f32 v123, v123, v123\nv_lshlrev_b32 v123, 16, v123")
    s("v_sqrt_f32 v123, v123\nv_cvt_pk_bf16_f32 v123, v123, v123\nv_lshlrev_b32 v123, 16, v123\nv_rcp_f32 v123, v123")
    s("s_lshl_b64 exec, 1, 63")
    s(f"s_add_u32 s77, s77, {WS_STAT}\ns_nop 0")
    s(f"buffer_store_dwordx2 v[122:123], off, s[{sWS}:{sWS+3}], s77 sc1", tag="pub")
    s("s_mov_b64 exec, -1")
    if not dft:
        s.wait_vm("colld")
        s("v_mov_b32 v2, 0\nv_mov_b32 v3, 0\nv_mov_b32 v4, 0\nv_mov_b32 v5, 0")
        for i in range(5):
            s(f"v_lshlrev_b32 v6, 16, v{92+i}\nv_and_b32 v7, 0xffff0000, v{92+i}\nv_add_f32 v2, v2, v6\nv_add_f32 v3, v3, v7")
            s(f"v_lshlrev_b32 v6, 16, v{97+i}\nv_and_b32 v7, 0xffff0000, v{97+i}\nv_add_f32 v4, v4, v6\nv_add_f32 v5, v5, v7")
        s("v_permlane32_swap_b32 v2, v4\nv_permlane32_swap_b32 v3, v5\nv_add_f32 v2, v2, v4\nv_add_f32 v3, v3, v5")
        s(f"s_lshl_b32 s{sT1}, s{sW}, 9\ns_add_u32 s{sT1}, s{sT1}, {LDS_CP}\nv_lshlrev_b32 v6, 3, v{vL}\nv_add_u32 v6, s{sT1}, v6")
        s("ds_write_b64 v6, v[2:3]", tag="cpw")
    return s

def colsum_publish():
    s = Stream()
    s(f"v_and_b32 v84, 15, v{vL}\nv_lshrrev_b32 v85, 4, v{vL}\ns_lshl_b32 s{sT1}, s{sW}, 6")
    s(f"v_lshlrev_b32 v86, 9, v85\nv_lshl_add_u32 v86, v84, 2, v86\ns_add_u32 s{sT2}, s{sT1}, {LDS_CP}\nv_add_u32 v86, s{sT2}, v86")
    s("ds_read_b32 v87, v86", tag="cpr"); s("ds_read_b32 v88, v86 offset:2048", tag="cpr")
    s(f"s_lshl_b32 s{sT2}, s{sNI}, 12\ns_lshl_b32 s{sT3}, s{sMI}, 9\ns_add_u32 s{sT2}, s{sT2}, s{sT3}\ns_add_u32 s{sT2}, s{sT2}, s{sT1}\ns_add_u32 s80, s{sT2}, {WS_CPART}")
    s(f"v_lshlrev_b32 v89, 2, v84")
    s.wait_ds("cpr")
    s("v_add_f32 v87, v87, v88\nv_mov_b32 v88, v87\nv_permlane16_swap_b32 v88, v87\nv_add_f32 v87, v87, v88")
    s("v_mov_b32 v88, v87\nv_permlane32_swap_b32 v88, v87\nv_add_f32 v87, v87, v88")
    g = Stream()
    g("s_mov_b64 exec, 0xffff")
    g(f"buffer_store_dword v87, v89, s[{sWS}:{sWS+3}], s80 offen sc1", tag="pub")
    g("s_mov_b64 exec, -1")
    s.group(g)
    return s

def arrive():
    g = Stream()
    g(f"s_cmp_lg_u32 s{sW}, 0\ns_cbranch_scc1 K1_ARR_\\V")
    g(f"s_and_b32 s{sT1}, s2, 7\ns_lshl_b32 s{sT1}, s{sT1}, 5\nv_mov_b32 v126, 1\ns_mov_b64 exec, 1")
    g.append(Op(f"buffer_atomic_add v126, off, s[{sDBG}:{sDBG+3}], s{sT1}", "optvm"))
    g("s_mov_b64 exec, -1\nK1_ARR_\\V:")
    s = Stream(); s.group(g)
    return s

def poll_issue():
    s = Stream()
    s(f"v_and_b32 v116, 7, v{vL}\nv_lshlrev_b32 v116, 5, v116")
    s(f"buffer_load_dword v117, v116, s[{sDBG}:{sDBG+3}], 0 offen sc1", tag="poll")
    return s

def poll_check():
    g = Stream()
    g.wait_vm("poll")
    g("v_cmp_ne_u32 vcc, 32, v117\ns_cbranch_vccnz K1_SPIN_\\V\nK1_SPUN_\\V:")
    s = Stream(); s.group(g)
    return s

def spin_block():
    s = Stream()
    s(f"K1_SPIN_\\V:\ns_mov_b32 s{sT1}, 0\nK1_SPINL_\\V:")
    s(f"buffer_load_dword v117, v116, s[{sDBG}:{sDBG+3}], 0 offen sc1\ns_add_u32 s{sT1}, s{sT1}, 1\ns_waitcnt vmcnt(0)")
    s(f"v_cmp_ne_u32 vcc, 32, v117\ns_cmp_ge_u32 s{sT1}, 200000\ns_cbranch_scc1 K1_SPUN_\\V\ns_cbranch_vccz K1_SPUN_\\V\ns_branch K1_SPINL_\\V")
    return s

def stats_fetch(dft):
    s = Stream()
    if not dft:
        s(f"v_and_b32 v116, 31, v{vL}\ns_lshl_b32 s{sT1}, s{sW}, 5\nv_add_u32 v116, s{sT1}, v116")
        s(f"s_lshl_b32 s{sT2}, s{sMI}, 11\nv_lshlrev_b32 v118, 3, v116\ns_add_u32 s{sT2}, s{sT2}, {WS_STAT}")
        s(f"buffer_load_dwordx2 v[120:121], v118, s[{sWS}:{sWS+3}], s{sT2} offen sc1", tag="stld")
        s(f"v_and_b32 v119, 15, v{vL}\nv_lshrrev_b32 v122, 4, v{vL}\nv_lshlrev_b32 v122, 9, v122\nv_lshl_add_u32 v122, v119, 2, v122")
        s(f"s_lshl_b32 s{sT1}, s{sW}, 6\ns_lshl_b32 s{sT2}, s{sNI}, 12\ns_add_u32 s{sT2}, s{sT2}, s{sT1}\ns_add_u32 s{sT2}, s{sT2}, {WS_CPART}")
        s(f"buffer_load_dword v123, v122, s[{sWS}:{sWS+3}], s{sT2} offen sc1", tag="stld")
        s(f"buffer_load_dword v124, v122, s[{sWS}:{sWS+3}], s{sT2} offen offset:2048 sc1", tag="stld")
    else:
        s(f"v_bfe_u32 v116, v{vL}, 4, 1\nv_lshlrev_b32 v116, 9, v116\nv_and_b32 v118, 3, v{vL}\nv_lshl_add_u32 v116, v118, 6, v116")
        s(f"v_bfe_u32 v118, v{vL}, 2, 2\nv_add_u32 v116, v116, v118")
        s(f"s_mul_hi_u32 s{sT1}, s{sAI}, 0x333334")
        s(f"s_lshl_b32 s{sT1}, s{sT1}, 3\ns_add_u32 s{sT1}, s{sT1}, {WS_STAT}\nv_lshlrev_b32 v118, 3, v116")
        s(f"buffer_load_dwordx2 v[120:121], v118, s[{sWS}:{sWS+3}], s{sT1} offen sc1", tag="stld")
    return s

def stats_store(dft):
    s = Stream()
    s.wait_vm("stld")
    if not dft:
        s(f"v_mul_f32 v121, v121, v121\nv_lshlrev_b32 v118, 3, v116\nv_add_u32 v118, {LDS_ST}, v118")
        s("ds_write_b64 v118, v[120:121]", tag="stw")
        s("v_add_f32 v123, v123, v124\nv_mov_b32 v124, v123\nv_permlane16_swap_b32 v124, v123\nv_add_f32 v123, v123, v124")
        s("v_mov_b32 v124, v123\nv_permlane32_swap_b32 v124, v123\nv_add_f32 v123, v123, v124")
        s(f"s_lshl_b32 s{sT1}, s{sW}, 6\ns_add_u32 s{sT1}, s{sT1}, {LDS_COL}\nv_lshl_add_u32 v119, v119, 2, s{sT1}")
        s("ds_write_b32 v119, v123", tag="stw")
    else:
        s(f"v_and_b32 v118, 31, v{vL}\ns_lshl_b32 s{sT1}, s{sW}, 7\ns_add_u32 s{sT1}, s{sT1}, {LDS_ST}\nv_lshl_add_u32 v118, v118, 2, s{sT1}")
        s(f"v_mul_f32 v120, v120, v121\nv_mul_f32 v120, 0x44200000, v120")
        s("ds_write_b32 v118, v121", tag="stw"); s("ds_write_b32 v118, v120 offset:1024", tag="stw")
    return s

def epilogue_glu():
    s = Stream()
    s(f"v_and_b32 v2, 15, v{vL}\nv_lshrrev_b32 v3, 4, v{vL}")
    s(f"s_lshl_b32 s{sT1}, s{sWM}, 9\ns_add_u32 s{sT1}, s{sT1}, {LDS_ST}\nv_lshl_add_u32 v4, v2, 3, s{sT1}")
    s(f"s_lshl_b32 s{sT1}, s{sWN}, 7\ns_add_u32 s{sT1}, s{sT1}, {LDS_COL}\nv_lshl_add_u32 v5, v3, 4, s{sT1}")
    for mt in range(4): s(f"ds_read_b64 v[{20+2*mt}:{21+2*mt}], v4 offset:{mt*128}", tag="e1")
    for a in range(2):
        s(f"ds_read_b128 v[{28+4*a}:{31+4*a}], v5 offset:{a*64}", tag="e1")
        s(f"ds_read_b128 v[{36+4*a}:{39+4*a}], v5 offset:{256 + a*64}", tag="e1")
    s(f"s_lshl_b32 s{sT1}, s{sMI}, 4\ns_lshl_b32 s{sT2}, s{sWM}, 2\ns_add_u32 s{sT1}, s{sT1}, s{sT2}\ns_mul_i32 s{sT1}, s{sT1}, 54")
    s(f"s_lshl_b32 s{sT2}, s{sNI}, 1\ns_add_u32 s{sT1}, s{sT1}, s{sT2}\ns_add_u32 s{sT1}, s{sT1}, s{sWN}\ns_lshl_b32 s{sT1}, s{sT1}, 10\ns_add_u32 s{sT1}, s{sT1}, {WS_H}")
    s(f"v_lshlrev_b32 v6, 4, v{vL}")
    s.wait_ds("e1")
    for mt in range(4):
        ms = 20 + 2 * mt
        o = 44 + 4 * (mt & 1) + 8 * 0
        o = 44 + 4 * mt
        for a in range(2):
            G = ACC + 4 * (2 * mt + a); U = G + 32
            for p in range(2):
                g, u = G + 2 * p, U + 2 * p
                cg, cu = 28 + 4 * a + 2 * p, 36 + 4 * a + 2 * p
                s(f"v_pk_fma_f32 v[{g}:{g+1}], v[{ms}:{ms+1}], v[{cg}:{cg+1}], v[{g}:{g+1}] op_sel_hi:[0,1,1] neg_lo:[1,0,0] neg_hi:[1,0,0]")
                s(f"v_pk_fma_f32 v[{u}:{u+1}], v[{ms}:{ms+1}], v[{cu}:{cu+1}], v[{u}:{u+1}] op_sel_hi:[0,1,1] neg_lo:[1,0,0] neg_hi:[1,0,0]")
                s(f"v_pk_mul_f32 v[{g}:{g+1}], v[{g}:{g+1}], v[{ms}:{ms+1}] op_sel:[0,1] op_sel_hi:[1,1]")
                s(f"v_pk_mul_f32 v[{g}:{g+1}], v[{g}:{g+1}], v[{u}:{u+1}]")
                s(f"v_cvt_pk_bf16_f32 v{o + 2*a + p}, v{g}, v{g+1}")
        s(f"buffer_store_dwordx4 v[{o}:{o+3}], v6, s[{sWS}:{sWS+3}], s{sT1} offen sc1")
        if mt < 3: s(f"s_add_u32 s{sT1}, s{sT1}, {54*1024}")
    return s

def epilogue_dft():
    s = Stream()
    s(f"v_and_b32 v2, 15, v{vL}\nv_lshrrev_b32 v3, 4, v{vL}")
    s(f"s_lshl_b32 s{sT1}, s{sWM}, 8\ns_add_u32 s{sT1}, s{sT1}, {LDS_ST}\nv_lshl_add_u32 v4, v3, 4, s{sT1}")
    for mt in range(4): s(f"ds_read_b128 v[{20+4*mt}:{23+4*mt}], v4 offset:{mt*64}", tag="e1")
    for mt in range(4): s(f"ds_read_b128 v[{36+4*mt}:{39+4*mt}], v4 offset:{1024 + mt*64}", tag="e1")
    s(f"v_and_b32 v5, 1, v{vL}\nv_lshlrev_b32 v5, 31, v5\nv_or_b32 v52, 0x3f800000, v5")
    s(f"s_sub_u32 s{sT1}, s{sNI}, 27\ns_or_b32 s{sT1}, s{sT1}, s{sWN}\ns_cmp_eq_u32 s{sT1}, 0\ns_cselect_b32 s{sT1}, 1.0, 0")
    s(f"v_cmp_eq_u32 vcc, 0, v2\nv_mov_b32 v5, s{sT1}\nv_cndmask_b32 v54, 0, v5, vcc")
    s(f"s_mul_i32 s{sT1}, s{sW}, 9216\nv_mul_u32_u24 v6, 144, v2\nv_lshl_add_u32 v6, v3, 4, v6\nv_add_u32 v6, s{sT1}, v6")
    s(f"v_lshrrev_b32 v7, 3, v{vL}\nv_and_b32 v8, 7, v{vL}\nv_mul_u32_u24 v9, 144, v7\nv_lshl_add_u32 v9, v8, 4, v9\nv_add_u32 v9, s{sT1}, v9")
    s(f"v_lshlrev_b32 v7, 13, v7\nv_lshl_add_u32 v7, v8, 4, v7")
    s.wait_ds("e1")
    for nt in range(4):
        for P in range(2):
            o = 56 + 4 * ((2 * nt + P) & 3)
            for hh in range(2):
                mt = 2 * P + hh
                lo = ACC + 4 * (4 * mt + nt); hi = lo + 64
                for p in range(2):
                    a, b = lo + 2 * p, hi + 2 * p
                    rs = 20 + 4 * mt + 2 * p; cr = 36 + 4 * mt + 2 * p
                    s(f"v_pk_fma_f32 v[{a}:{a+1}], v[{b}:{b+1}], v[52:53], v[{a}:{a+1}] op_sel_hi:[1,0,1]")
                    s(f"v_pk_mul_f32 v[{a}:{a+1}], v[{a}:{a+1}], v[{rs}:{rs+1}]")
                    if nt == 0:
                        s(f"v_pk_fma_f32 v[{a}:{a+1}], v[{cr}:{cr+1}], v[54:55], v[{a}:{a+1}] op_sel_hi:[1,0,1] neg_lo:[1,0,0] neg_hi:[1,0,0]")
                    s(f"v_cvt_pk_bf16_f32 v{o + 2*hh + p}, v{a}, v{a+1}")
            s(f"ds_write_b128 v6, v[{o}:{o+3}] offset:{nt*16*144 + P*64}", tag="bw")
    s(f"s_sub_u32 s{sT1}, s{sNI}, 27\ns_lshl_b32 s{sT1}, s{sT1}, 1\ns_add_u32 s{sT1}, s{sT1}, s{sWN}\ns_lshl_b32 s{sT1}, s{sT1}, 18")
    s(f"s_and_b32 s{sT2}, s{sMI}, 1\ns_lshl_b32 s{sT2}, s{sT2}, 11\ns_add_u32 s{sT1}, s{sT1}, s{sT2}")
    s(f"s_lshr_b32 s{sT2}, s{sMI}, 2\ns_lshl_b32 s{sT2}, s{sT2}, 10\ns_add_u32 s{sT1}, s{sT1}, s{sT2}")
    s(f"s_bfe_u32 s{sT2}, s{sMI}, 0x10001\ns_lshl_b32 s{sT2}, s{sT2}, 9\ns_add_u32 s{sT1}, s{sT1}, s{sT2}")
    s(f"s_lshl_b32 s{sT2}, s{sWM}, 7\ns_add_u32 s{sT1}, s{sT1}, s{sT2}\ns_add_u32 s{sT1}, s{sT1}, {WS_AT}")
    s.wait_ds("bw")
    for i in range(8):
        r = 60 + 4 * i if i < 8 else 0
        s(f"ds_read_b128 v[{72+4*i}:{75+4*i}], v9 offset:{i*8*144}", tag=f"br{i}")
    for i in range(8):
        nt = i >> 1; part, gk = nt >> 1, nt & 1
        off = (16 * gk + 8 * (i & 1)) * 8192 + part * 4096
        s.wait_ds(f"br{i}")
        s(f"s_add_u32 s{sT2}, s{sT1}, {off}")
        s(f"buffer_store_dwordx4 v[{72+4*i}:{75+4*i}], v7, s[{sWS}:{sWS+3}], s{sT2} offen sc1")
    return s

vROT = 84
vC0, vS0, vC64, vS64 = 98, 99, 100, 101
vFW = 102
vGT = 104
vTMP = 112

def fgen_setup():
    s = Stream()
    s(f"s_sub_u32 s{sT1}, s{sNI}, 27\ns_lshl_b32 s{sT1}, s{sT1}, 6\ns_and_b32 s{sT2}, s{sW}, 3\ns_lshl_b32 s{sT2}, s{sT2}, 4\ns_add_u32 s{sT1}, s{sT1}, s{sT2}")
    s(f"v_and_b32 v2, 15, v{vL}\nv_add_u32 v2, s{sT1}, v2\nv_cvt_f32_u32 v3, v2")
    s(f"v_cmp_eq_u32 s[{sMASK}:{sMASK+1}], 0, v2")
    s(f"s_lshr_b32 s{sT2}, s{sW}, 2\ns_lshl_b32 s{sT2}, s{sT2}, 5\nv_lshrrev_b32 v4, 4, v{vL}\nv_lshl_add_u32 v4, v4, 3, s{sT2}\nv_cvt_f32_u32 v4, v4")
    def angle(dst_c, dst_s, src, neg):
        s(f"v_mul_f32 v5, {INV640}, {src}\nv_floor_f32 v5, v5\nv_fma_f32 v5, v5, s{sT3}, {src}\nv_mul_f32 v5, {INV640}, v5")
        s(f"v_cos_f32 v{dst_c}, v5\nv_sin_f32 v{dst_s}, v5")
        if neg: s(f"v_sub_f32 v{dst_s}, 0, v{dst_s}")
    s(f"s_mov_b32 s{sT3}, {f2h(-640.0)}")
    for j in range(1, 8):
        s(f"v_mul_f32 v6, {float(j) if j in (1,2,4) else f2h(float(j))}, v3")
        angle(vROT + 2*(j-1), vROT + 2*(j-1) + 1, "v6", False)
    s("v_mul_f32 v6, v3, v4"); angle(vC0, vS0, "v6", True)
    s(f"v_mul_f32 v6, {f2h(64.0)}, v3"); angle(vC64, vS64, "v6", False)
    s(f"s_lshr_b32 s{sT1}, s{sW}, 2\ns_lshl_b32 s{sT1}, s{sT1}, 13\ns_and_b32 s{sT2}, s{sW}, 3\ns_lshl_b32 s{sT2}, s{sT2}, 10")
    s(f"s_add_u32 s{sT1}, s{sT1}, s{sT2}\ns_add_u32 s{sT1}, s{sT1}, {LDS_B}\nv_lshlrev_b32 v5, 4, v{vL}\nv_add_u32 v{vFW}, s{sT1}, v5")
    s(f"v_mov_b32 v103, 0xbf803f80")
    return s

def fgen(p):
    s = Stream()
    t = vTMP
    for jj in range(4):
        vals = []
        for j in (2*jj, 2*jj + 1):
            c, sn = t + 2*(j & 1), t + 4 + 2*(j & 1)
            if j == 0:
                vals.append((vC0, vS0)); continue
            cj, sj = vROT + 2*(j-1), vROT + 2*(j-1) + 1
            cc, ss = t + (j & 1), t + 2 + (j & 1)
            s(f"v_mul_f32 v{cc}, v{vC0}, v{cj}\nv_mul_f32 v{ss}, v{vS0}, v{cj}")
            s(f"v_fmac_f32 v{cc}, v{vS0}, v{sj}\nv_fma_f32 v{ss}, -v{vC0}, v{sj}, v{ss}")
            vals.append((cc, ss))
        s(f"v_cvt_pk_bf16_f32 v{vGT+jj}, v{vals[0][0]}, v{vals[1][0]}")
        s(f"v_cvt_pk_bf16_f32 v{vGT+4+jj}, v{vals[0][1]}, v{vals[1][1]}")
        s(f"v_cndmask_b32 v{vGT+4+jj}, v{vGT+4+jj}, v103, s[{sMASK}:{sMASK+1}]")
    buf = p & 1
    s(f"ds_write_b128 v{vFW}, v[{vGT}:{vGT+3}] offset:{buf*16384}", tag=f"fw{p}")
    s(f"ds_write_b128 v{vFW}, v[{vGT+4}:{vGT+7}] offset:{buf*16384 + 4096}", tag=f"fw{p}")
    if p < 4:
        s(f"v_mul_f32 v{t}, v{vC0}, v{vC64}\nv_mul_f32 v{t+1}, v{vS0}, v{vC64}")
        s(f"v_fmac_f32 v{t}, v{vS0}, v{vS64}\nv_fma_f32 v{vS0}, -v{vC0}, v{vS64}, v{t+1}\nv_mov_b32 v{vC0}, v{t}")
    return s

def path(dft, side=None, opts=None):
    opts = opts or {}
    V = "D" if dft else "G"
    s = Stream()
    s.extend(stats_loads(dft))
    s.extend(dma_addr_setup(dft))
    for b in range(3):
        for g in dma_stage(b, dft): s.extend(g)
    stamp(s, 2)
    s.extend(lds_addr_setup(dft))
    nacc = 128 if dft else 64
    for r in range(nacc): s(f"v_mov_b32 v{ACC + r}, 0")
    if dft:
        s.extend(fgen_setup()); s.extend(fgen(0))
    s.extend(stats_compute(dft))
    if side is not None and not dft: s.extend(side)
    stamp(s, 4)
    s.wait_ds("all"); s.wait_vm("stage0"); s("s_barrier")
    stamp(s, 5)
    s.extend(frag_reads(0, dft))
    pend_dma = []
    for b in range(10):
        fill = Stream()
        rd = frag_reads(2*b + 1, dft)
        extra = Stream()
        if b == 0 and not dft: extra.extend(colsum_publish())
        if b == 2: extra.extend(arrive())
        if b == 5: extra.extend(poll_issue())
        if b == 6: extra.extend(poll_check()); extra.extend(stats_fetch(dft))
        if b == 8: extra.extend(stats_store(dft))
        if dft and b % 2 == 0 and b // 2 + 1 <= 4: extra.extend(fgen(b // 2 + 1))
        dm = Stream()
        for g in pend_dma: dm.extend(g)
        pend_dma = []
        main = mfmas(2*b, dft)
        m0 = Stream(); m0.wait_ds(f"rd{2*b}")
        body = merge(main, [rd, dm, extra])
        s.extend(m0); s.extend(body)
        s.wait_ds("all")
        if b + 1 <= 9: s.wait_vm(f"stage{b+1}")
        if b == 1: s.wait_vm("pub")
        s("s_barrier")
        groups = dma_stage(b + 3, dft) if b + 3 <= 9 else []
        half = (len(groups) + 1) // 2
        dm = Stream()
        for g in groups[:half]: dm.extend(g)
        pend_dma = groups[half:]
        rd = frag_reads(2*b + 2, dft) if b < 9 else Stream()
        body = merge(mfmas(2*b + 1, dft), [rd, dm])
        s.extend(body)
    stamp(s, 6)
    s.extend(epilogue_dft() if dft else epilogue_glu())
    stamp_out(s, 8)
    s("s_endpgm")
    s.extend(spin_block())
    s = flatten(s)
    for op in s: op.text = op.text.replace("\\V", V)
    return s

def kernel(name="k1_kernel", side=None):
    h = head()
    h(f"s_cmp_ge_u32 s{sNI}, 27\ns_cbranch_scc1 K1_DFT")
    g = Stream(); g.extend(h); g.extend(path(False, side))
    lines = finish(g)
    d = Stream(); d("K1_DFT:"); d.extend(path(True))
    lines += finish(d)
    lines += ["K1_END:", "s_endpgm"]
    return f".globl {name}\n.p2align 8\n.type {name},@function\n{name}:\n" + "\n".join(lines) + "\n"
```

```python
from emit import *
from common import *

sX, sOUT, sWS, sWK, sDBG, sWSI = 8, 12, 16, 20, 24, 28
sW, sMB, sNB = 40, 41, 42
sH, sB = 44, 48
sT0, sT1, sT2, sT3 = 54, 55, 56, 57
vL = 1
RED = 21504
L_T1 = 0
L_T3 = L_T1 + 16384
L_F64 = L_T3 + 16384
L_F32 = L_F64 + 24576
L_FLAG = L_F32 + 6144
L_BNC = L_FLAG + 128
L_GEMM = L_BNC + 2 * 4608
LDS_BYTES = L_GEMM + 4 * RED

STAMPS = False
WS_STAMP = 0x15A0000
def stamp(s, i):
    if STAMPS: s(f"s_memrealtime s[{84+2*i}:{85+2*i}]")
def stamp_out(s, n):
    if not STAMPS: return
    s("s_waitcnt vmcnt(0)"); stamp(s, n - 1); s("s_waitcnt lgkmcnt(0)")
    s(f"s_lshl_b32 s{sT1}, s2, 3\ns_add_u32 s{sT1}, s{sT1}, s{sW}\ns_lshl_b32 s{sT1}, s{sT1}, 5\ns_add_u32 s{sT1}, s{sT1}, {WS_STAMP}")
    for i in range(n): s(f"v_mov_b32 v{20+i}, s{84+2*i}")
    s("s_mov_b64 exec, 1")
    s(f"buffer_store_dwordx4 v[20:23], off, s[{sWS}:{sWS+3}], s{sT1}")
    s(f"buffer_store_dwordx4 v[24:27], off, s[{sWS}:{sWS+3}], s{sT1} offset:16")

def head():
    s = Stream()
    if STAMPS: s("s_memrealtime s[84:85]")
    s("s_cmp_ge_u32 s2, 256\ns_cbranch_scc1 K2_END")
    s("s_load_dwordx2 s[60:61], s[0:1], 0\ns_load_dwordx4 s[64:67], s[0:1], 56\ns_load_dwordx2 s[68:69], s[0:1], 72")
    s(f"v_and_b32 v{vL}, 63, v0\nv_lshrrev_b32 v2, 6, v0")
    s("s_and_b32 s3, s2, 7\ns_lshr_b32 s4, s2, 3")
    s(f"v_readfirstlane_b32 s{sW}, v2")
    s(f"s_and_b32 s5, s3, 3\ns_lshl_b32 s5, s5, 3\ns_and_b32 s6, s4, 7\ns_add_u32 s{sMB}, s5, s6")
    s(f"s_lshr_b32 s5, s3, 2\ns_lshl_b32 s5, s5, 2\ns_lshr_b32 s6, s4, 3\ns_add_u32 s{sNB}, s5, s6")
    s(f"v_mov_b32 v2, {L_FLAG}\nv_mov_b32 v3, 0\nds_write_b32 v2, v3")
    s("s_waitcnt lgkmcnt(0)")
    srd(s, sX, 60, S * D * 2)
    srd(s, sOUT, 64, S * D * 2)
    srd(s, sDBG, 66, 256)
    srd(s, sWS, 68, WS_SIZE)
    srd(s, sWK, 68, WS_SIZE)
    srd(s, sWSI, 68, WS_SIZE)
    s("s_barrier")
    return s

SETS = [20, 56, 92]
ACC = 176
XR, ZF, EA, EG = 120, (130, 146), 162, 167

def gemm_path():
    s = Stream()
    s(f"v_lshlrev_b32 v2, 4, v{vL}")
    s(f"s_mul_i32 s{sT0}, s{sW}, 14\ns_cmp_eq_u32 s{sW}, 3\ns_cselect_b32 s{sT1}, 1, 0\ns_sub_u32 s{sT0}, s{sT0}, s{sT1}")
    s(f"s_lshl_b32 s{sT1}, s{sMB}, 2\ns_mul_i32 s{sT1}, s{sT1}, 54\ns_add_u32 s{sT1}, s{sT1}, s{sT0}\ns_lshl_b32 s{sT1}, s{sT1}, 10\ns_add_u32 s{sH}, s{sT1}, {WS_H}")
    for st in range(1, 4): s(f"s_add_u32 s{sH+st}, s{sH}, {st*54*1024}")
    s(f"s_mul_i32 s{sT1}, s{sNB}, {5*74}\ns_add_u32 s{sT1}, s{sT1}, s{sT0}\ns_lshl_b32 s{sT1}, s{sT1}, 10\ns_add_u32 s{sB}, s{sT1}, {WS_WB}")
    for dt in range(1, 5): s(f"s_add_u32 s{sB+dt}, s{sB}, {dt*74*1024}")
    def loads(u):
        st0 = SETS[u % 3]
        g = Stream()
        if u == 13:
            g(f"s_cmp_ge_u32 s{sW}, 2\ns_cselect_b32 s{sWK+2}, 0, s{sWK+2}")
        order = [("h", 0), ("b", 0), ("h", 1), ("b", 1), ("h", 2), ("b", 2), ("h", 3), ("b", 3), ("b", 4)]
        for kind, i in order:
            r = st0 + 4 * i if kind == "h" else st0 + 16 + 4 * i
            so = sH + i if kind == "h" else sB + i
            g(f"buffer_load_dwordx4 v[{r}:{r+3}], v2, s[{sWK}:{sWK+3}], s{so} offen", tag=f"ld{u}")
        g(f"s_add_u32 s{sWK}, s{sWK}, 1024\ns_addc_u32 s{sWK+1}, s{sWK+1}, 0")
        return g
    def mfmas(u, first):
        st0 = SETS[u % 3]
        g = Stream()
        for st in range(4):
            for dt in range(5):
                acc = ACC + 4 * (5 * st + dt)
                c = "0" if first else f"v[{acc}:{acc+3}]"
                g(f"v_mfma_f32_16x16x32_bf16 v[{acc}:{acc+3}], v[{st0+16+4*dt}:{st0+19+4*dt}], v[{st0+4*st}:{st0+4*st+3}], {c}")
        return g
    s.extend(loads(0)); s.extend(loads(1))
    stamp(s, 1)
    for u in range(14):
        s.wait_vm(f"ld{u}")
        nxt = loads(u + 2) if u + 2 < 14 else Stream()
        s.extend(merge(mfmas(u, u == 0), [nxt], front=False))
        if u == 0: stamp(s, 2)
    stamp(s, 3)
    s(f"s_mul_i32 s{sT1}, s{sNB}, {5*74}\ns_mul_i32 s{sT0}, s{sW}, 5\ns_add_u32 s{sT1}, s{sT1}, s{sT0}\ns_add_u32 s{sT1}, s{sT1}, 54")
    s(f"s_lshl_b32 s{sT1}, s{sT1}, 10\ns_add_u32 s{sB}, s{sT1}, {WS_WB}")
    for dt in range(1, 5): s(f"s_add_u32 s{sB+dt}, s{sB}, {dt*74*1024}")
    s(f"v_and_b32 v3, 7, v{vL}\nv_lshlrev_b32 v3, 5, v3\nv_mov_b32 v4, 40\nv_mov_b32 v5, 41\nv_cmp_eq_u32 vcc, 0, v3\nv_cndmask_b32 v4, v4, v5, vcc")
    s(f"buffer_load_dword v5, v3, s[{sDBG}:{sDBG+3}], 0 offen sc1", tag="poll")
    for z in range(5):
        for dt in range(5):
            r = 20 + 4 * (5 * z + dt)
            if z < 4:
                s(f"buffer_load_dwordx4 v[{r}:{r+3}], v2, s[{sWS}:{sWS+3}], s{sB+dt} offen offset:{z*1024}", tag=f"g{z}")
            else:
                s(f"s_add_u32 s{sT0}, s{sB+dt}, 4096")
                s(f"buffer_load_dwordx4 v[{r}:{r+3}], v2, s[{sWS}:{sWS+3}], s{sT0} offen", tag=f"g{z}")
    s(f"s_lshl_b32 s{sT0}, s{sW}, 4")
    for i in range(5):
        s(f"v_add_u32 v6, {64*i}, v{vL}\nv_mul_u32_u24 v7, 3277, v6\nv_lshrrev_b32 v7, 16, v7")
        s(f"v_mul_u32_u24 v8, 20, v7\nv_sub_u32 v8, v6, v8\nv_add_u32 v7, s{sT0}, v7")
        s(f"v_mul_u32_u24 v9, 336, v7\nv_lshl_add_u32 v9, v8, 4, v9\nv_add_u32 v{EA+i}, {L_GEMM}, v9")
        s(f"v_mul_u32_u24 v9, 1280, v7\nv_lshl_add_u32 v{EG+i}, v8, 3, v9")
    s(f"s_lshl_b32 s{sT2}, s{sMB}, 6\ns_mul_i32 s{sT2}, s{sT2}, 1280\ns_mul_i32 s{sT3}, s{sNB}, 160\ns_add_u32 s58, s{sT2}, s{sT3}")
    for i in range(5):
        s(f"buffer_load_dwordx2 v[{XR+2*i}:{XR+1+2*i}], v{EG+i}, s[{sX}:{sX+3}], s58 offen", tag="xld")
    g = Stream()
    g.wait_vm("poll")
    g("v_cmp_ne_u32 vcc, v4, v5\ns_cbranch_vccnz K2_SPIN\nK2_SPUN:")
    s.group(g)
    stamp(s, 4)
    s(f"v_lshrrev_b32 v6, 3, v{vL}\nv_lshlrev_b32 v6, 12, v6\nv_bfe_u32 v7, v{vL}, 4, 1\nv_lshlrev_b32 v7, 1, v7\nv_and_b32 v8, 7, v{vL}\nv_xor_b32 v7, v7, v8")
    s(f"v_lshl_add_u32 v6, v7, 4, v6\nv_xor_b32 v7, 64, v6")
    s(f"s_mul_i32 s{sT0}, s{sW}, {160*4096}\ns_lshl_b32 s{sT1}, s{sMB}, 7\ns_add_u32 s{sT0}, s{sT0}, s{sT1}\ns_add_u32 s{sT0}, s{sT0}, {WS_ZT}")
    s(f"s_mul_i32 s59, s{sW}, {RED}\ns_add_u32 s59, s59, {L_GEMM}")
    for i in range(20):
        s(f"s_add_u32 m0, s59, {i*1024}")
        s(f"buffer_load_dwordx4 v{6 + (i & 1)}, s[{sWS}:{sWS+3}], s{sT0} offen sc1 lds", tag=f"z{i//4}")
        if i < 19: s(f"s_add_u32 s{sT0}, s{sT0}, {8*4096}")
    s(f"v_and_b32 v8, 15, v{vL}\nv_lshrrev_b32 v9, 4, v{vL}\nv_lshrrev_b32 v10, 2, v8\nv_lshl_add_u32 v10, v9, 3, v10")
    s(f"v_bfe_u32 v11, v{vL}, 3, 1\nv_and_b32 v12, 1, v9\nv_lshl_or_b32 v11, v12, 1, v11")
    s(f"v_lshlrev_b32 v11, 5, v11\nv_lshl_add_u32 v10, v10, 7, v11\nv_and_b32 v12, 3, v8\nv_lshl_add_u32 v10, v12, 3, v10\nv_add_u32 v12, s59, v10")
    for st in range(1, 4): s(f"v_xor_b32 v{12+st}, {32*st}, v12")
    def zreads(z):
        g = Stream(); base = ZF[z & 1]
        for st in range(4):
            for jh in range(2):
                g(f"ds_read_b64_tr_b16 v[{base+4*st+2*jh}:{base+4*st+2*jh+1}], v{12+st} offset:{z*4096 + jh*512}", tag=f"zr{z}")
        return g
    def zmfmas(z):
        g = Stream(); base = ZF[z & 1]
        for st in range(4):
            for dt in range(5):
                acc = ACC + 4 * (5 * st + dt); gr = 20 + 4 * (5 * z + dt)
                g(f"v_mfma_f32_16x16x32_bf16 v[{acc}:{acc+3}], v[{gr}:{gr+3}], v[{base+4*st}:{base+4*st+3}], v[{acc}:{acc+3}]")
        return g
    s.wait_vm("z0"); s.extend(zreads(0))
    for z in range(5):
        nxt = Stream()
        if z < 4:
            nxt.wait_vm(f"z{z+1}"); nxt.extend(zreads(z + 1))
        s.wait_ds(f"zr{z}"); s.wait_vm(f"g{z}")
        s.extend(merge(zmfmas(z), [nxt]))
    stamp(s, 5)
    s(f"v_and_b32 v8, 15, v{vL}\nv_lshrrev_b32 v9, 4, v{vL}\nv_mul_u32_u24 v10, 336, v8\nv_lshl_add_u32 v10, v9, 4, v10\nv_add_u32 v10, s59, v10")
    for st in range(4):
        for dt in range(5):
            acc = ACC + 4 * (5 * st + dt)
            s(f"ds_write_b128 v10, v[{acc}:{acc+3}] offset:{st*16*336 + dt*64}", tag="rw")
    s.wait_ds("all"); s("s_barrier")
    for i in range(5):
        for p in range(4):
            r = 20 + 16 * i + 4 * p
            s(f"ds_read_b128 v[{r}:{r+3}], v{EA+i} offset:{p*RED}", tag=f"rr{i}")
    s.wait_vm("xld")
    for i in range(5):
        r = 20 + 16 * i
        s.wait_ds(f"rr{i}")
        for c in range(4):
            s(f"v_add_f32 v{r+c}, v{r+c}, v{r+4+c}\nv_add_f32 v{r+8+c}, v{r+8+c}, v{r+12+c}\nv_add_f32 v{r+c}, v{r+c}, v{r+8+c}")
        x0, x1 = XR + 2 * i, XR + 2 * i + 1
        s(f"v_lshlrev_b32 v3, 16, v{x0}\nv_and_b32 v4, 0xffff0000, v{x0}\nv_lshlrev_b32 v5, 16, v{x1}\nv_and_b32 v6, 0xffff0000, v{x1}")
        s(f"v_add_f32 v{r}, v{r}, v3\nv_add_f32 v{r+1}, v{r+1}, v4\nv_add_f32 v{r+2}, v{r+2}, v5\nv_add_f32 v{r+3}, v{r+3}, v6")
        s(f"v_cvt_pk_bf16_f32 v{r+4}, v{r}, v{r+1}\nv_cvt_pk_bf16_f32 v{r+5}, v{r+2}, v{r+3}")
        s(f"buffer_store_dwordx2 v[{r+4}:{r+5}], v{EG+i}, s[{sOUT}:{sOUT+3}], s58 offen")
    stamp_out(s, 8)
    s("s_endpgm")
    s(f"K2_SPIN:\ns_mov_b32 s{sT1}, 0\nK2_SPINL:")
    s.append(Op(f"buffer_load_dword v5, v3, s[{sDBG}:{sDBG+3}], 0 offen sc1", "raw"))
    s(f"s_add_u32 s{sT1}, s{sT1}, 1"); s.append(Op("s_waitcnt vmcnt(0)", "raw"))
    s(f"v_cmp_ne_u32 vcc, v4, v5\ns_cmp_ge_u32 s{sT1}, 200000\ns_cbranch_scc1 K2_SPUN\ns_cbranch_vccz K2_SPUN\ns_branch K2_SPINL")
    return s

XI = 20
WR = 52
FR, FI, FN = 84, 92, 100
TW = 108
AR, AI = 128, 160
FS = 192

def xi(part, T, t): return XI + 4 * ((part * 2 + T) * 2 + t)

def trig(s, dst_c, dst_s, src, scale):
    s(f"v_cvt_f32_u32 v9, {src}\nv_mul_f32 v9, {scale}, v9\nv_cos_f32 v{dst_c}, v9\nv_sin_f32 v{dst_s}, v9")

def tables():
    s = Stream()
    R2048, R64, R32 = f2h(1/2048), f2h(1/64), f2h(1/32)
    s(f"s_sub_u32 s{sT0}, s{sW}, 4")
    s(f"v_and_b32 v2, 31, v{vL}\nv_lshrrev_b32 v3, 5, v{vL}\nv_lshlrev_b32 v4, 4, v{vL}")
    for i in range(2):
        s(f"s_lshl_b32 s{sT1}, s{sT0}, 1\ns_add_u32 s{sT1}, s{sT1}, {i}")
        s(f"s_lshl_b32 s{sT2}, s{sT1}, 3")
        s(f"s_lshl_b32 s{sT3}, s{sT1}, 11\nv_add_u32 v5, s{sT3}, v4")
        s(f"v_lshl_add_u32 v6, v3, 2, s{sT2}")
        for r in range(4):
            s(f"v_add_u32 v7, {r}, v6\nv_mul_u32_u24 v7, v7, v2"); trig(s, 20 + r, 24 + r, "v7", R2048)
        s(f"ds_write_b128 v5, v[20:23] offset:{L_T1}\nds_write_b128 v5, v[24:27] offset:{L_T1 + 1024}")
        s(f"s_lshr_b32 s{sT2}, s{sT1}, 2\ns_lshl_b32 s{sT2}, s{sT2}, 5\nv_add_u32 v8, s{sT2}, v2")
        s(f"s_and_b32 s{sT2}, s{sT1}, 3\ns_lshl_b32 s{sT2}, s{sT2}, 3\nv_lshl_add_u32 v6, v3, 2, s{sT2}")
        for r in range(4):
            s(f"v_add_u32 v7, {r}, v6\nv_mul_u32_u24 v7, v7, v8"); trig(s, 28 + r, 32 + r, "v7", R2048)
        sc = f2h(1.0 / (640 * 2048))
        for r in range(8): s(f"v_mul_f32 v{28+r}, {sc}, v{28+r}")
        s(f"ds_write_b128 v5, v[28:31] offset:{L_T3 - 0}\nds_write_b128 v5, v[32:35] offset:{L_T3 + 1024}")
        s(f"s_lshr_b32 s{sT2}, s{sT1}, 2\ns_lshl_b32 s{sT2}, s{sT2}, 5\nv_add_u32 v8, s{sT2}, v2")
        s(f"s_and_b32 s{sT2}, s{sT1}, 3\ns_lshl_b32 s{sT2}, s{sT2}, 4\nv_lshl_add_u32 v6, v3, 2, s{sT2}")
        for j in range(8):
            s(f"v_add_u32 v7, {8*(j >> 2) + (j & 3)}, v6\nv_mul_u32_u24 v7, v7, v8\nv_and_b32 v7, 63, v7"); trig(s, 36 + j, 44 + j, "v7", R64)
        for jj in range(4):
            s(f"v_cvt_pk_bf16_f32 v{52+jj}, v{36+2*jj}, v{37+2*jj}\nv_cvt_pk_bf16_f32 v{60+jj}, v{44+2*jj}, v{45+2*jj}")
            s(f"v_xor_b32 v{56+jj}, 0x80008000, v{60+jj}")
        s(f"s_lshl_b32 s{sT3}, s{sT1}, 10\nv_add_u32 v5, s{sT3}, v4")
        s(f"ds_write_b128 v5, v[52:55] offset:{L_F64 - 0}")
        s(f"v_add_u32 v5, {L_F64}, v5\nds_write_b128 v5, v[56:59] offset:8192\nds_write_b128 v5, v[60:63] offset:16384")
    g = Stream()
    g(f"s_cmp_lt_u32 s{sW}, 6\ns_cbranch_scc1 K2_NOF32")
    g(f"s_sub_u32 s{sT1}, s{sW}, 6\ns_lshl_b32 s{sT2}, s{sT1}, 4\nv_lshl_add_u32 v6, v3, 2, s{sT2}")
    for j in range(8):
        g(f"v_add_u32 v7, {8*(j >> 2) + (j & 3)}, v6\nv_mul_u32_u24 v7, v7, v2\nv_and_b32 v7, 31, v7"); trig(g, 36 + j, 44 + j, "v7", R32)
    for jj in range(4):
        g(f"v_cvt_pk_bf16_f32 v{52+jj}, v{36+2*jj}, v{37+2*jj}\nv_cvt_pk_bf16_f32 v{60+jj}, v{44+2*jj}, v{45+2*jj}")
        g(f"v_xor_b32 v{56+jj}, 0x80008000, v{60+jj}")
    g(f"s_lshl_b32 s{sT3}, s{sT1}, 10\ns_add_u32 s{sT3}, s{sT3}, {L_F32}\nv_add_u32 v5, s{sT3}, v4")
    g("ds_write_b128 v5, v[52:55]\nds_write_b128 v5, v[56:59] offset:2048\nds_write_b128 v5, v[60:63] offset:4096")
    g("K2_NOF32:")
    s.extend(g)
    s(f"s_waitcnt lgkmcnt(0)\nv_mov_b32 v5, {L_FLAG}\nv_mov_b32 v6, 1\ns_mov_b64 exec, 1\nds_add_u32 v5, v6\ns_mov_b64 exec, -1")
    return s

def cmul_pass(s, table, conj_sign, acc_to_pack):
    def rd(blk, buf):
        b = TW + 8 * buf
        s(f"ds_read_b128 v[{b}:{b+3}], v4 offset:{table + blk*2048}", tag=f"tw{table}_{blk}")
        s(f"ds_read_b128 v[{b+4}:{b+7}], v4 offset:{table + blk*2048 + 1024}", tag=f"tw{table}_{blk}")
    rd(0, 0)
    for blk in range(8):
        T, g = blk >> 2, blk & 3
        if blk < 7: rd(blk + 1, (blk + 1) & 1)
        s.wait_ds(f"tw{table}_{blk}")
        b = TW + 8 * (blk & 1)
        for r in range(4):
            re, im = AR + 16*T + 4*g + r, AI + 16*T + 4*g + r
            c, sn = b + r, b + 4 + r
            t1, t2 = 224 + r, 228 + r
            if conj_sign < 0:
                s(f"v_mul_f32 v{t1}, v{re}, v{c}\nv_mul_f32 v{t2}, v{im}, v{c}\nv_fmac_f32 v{t1}, v{im}, v{sn}\nv_fma_f32 v{t2}, -v{re}, v{sn}, v{t2}")
            else:
                s(f"v_mul_f32 v{t1}, v{re}, v{c}\nv_mul_f32 v{t2}, v{im}, v{c}\nv_fma_f32 v{t1}, -v{im}, v{sn}, v{t1}\nv_fmac_f32 v{t2}, v{re}, v{sn}")
        t = g >> 1; o = 2 * (g & 1)
        s(f"v_cvt_pk_bf16_f32 v{xi(0,T,t)+o}, v224, v225\nv_cvt_pk_bf16_f32 v{xi(0,T,t)+o+1}, v226, v227")
        s(f"v_cvt_pk_bf16_f32 v{xi(1,T,t)+o}, v228, v229\nv_cvt_pk_bf16_f32 v{xi(1,T,t)+o+1}, v230, v231")

def M32(s, d, a, b, first):
    c = "0" if first else f"v[{d}:{d+15}]"
    s(f"v_mfma_f32_32x32x16_bf16 v[{d}:{d+15}], v[{a}:{a+3}], v[{b}:{b+3}], {c}")

def col_path():
    s = Stream()
    s.extend(tables())
    s(f"s_cmp_ge_u32 s{sW}, 6\ns_cbranch_scc1 K2_END")
    s(f"s_sub_u32 s{sT0}, s{sW}, 4\ns_lshl_b32 s{sT0}, s{sT0}, 8\ns_add_u32 s44, s2, s{sT0}")
    s("s_cmp_gt_u32 s44, 320\ns_cbranch_scc1 K2_END")
    stamp(s, 1)
    s("s_cmp_eq_u32 s44, 320\ns_cselect_b32 s45, 1, 0\ns_cselect_b32 s46, 0, s44")
    s(f"s_cmp_eq_u32 s46, 0\ns_cselect_b32 s{sWSI+2}, 0, s{sWSI+2}")
    s(f"s_lshl_b32 s47, s46, 13\ns_add_u32 s47, s47, {WS_AT}\ns_lshl_b32 s{sT0}, s45, 12\ns_add_u32 s48, s47, s{sT0}\ns_add_u32 s47, s47, 4096")
    s(f"s_lshl_b32 s49, s44, 13\ns_add_u32 s49, s49, {WS_WT}")
    s(f"s_lshl_b32 s50, s46, 1\ns_add_u32 s50, s50, s45\ns_lshl_b32 s50, s50, 12\ns_add_u32 s50, s50, {WS_ZT}\ns_add_u32 s51, s50, 4096")
    s(f"v_lshlrev_b32 v4, 4, v{vL}")
    for T in range(2):
        for t in range(2):
            o = T*2048 + t*1024
            r = xi(0, T, t)
            s(f"buffer_load_dwordx4 v[{r}:{r+3}], v4, s[{sWS}:{sWS+3}], s48 offen offset:{o}", tag="in")
            r = xi(1, T, t)
            s(f"buffer_load_dwordx4 v[{r}:{r+3}], v4, s[{sWSI}:{sWSI+3}], s47 offen offset:{o}", tag="in")
    for ug in range(8):
        if ug == 4: s("s_add_u32 s49, s49, 4096")
        s(f"buffer_load_dwordx4 v[{WR+4*ug}:{WR+4*ug+3}], v4, s[{sWS}:{sWS+3}], s49 offen offset:{(ug & 3)*1024}", tag="w")
    s(f"v_mov_b32 v5, {L_FLAG}\ns_mov_b32 s{sT1}, 0\nK2_TBL:\nds_read_b32 v6, v5\ns_add_u32 s{sT1}, s{sT1}, 1\ns_waitcnt lgkmcnt(0)")
    s(f"v_readfirstlane_b32 s{sT2}, v6\ns_cmp_ge_u32 s{sT1}, 1000000\ns_cbranch_scc1 K2_TBLD\ns_cmp_lt_u32 s{sT2}, 4\ns_cbranch_scc1 K2_TBL\nK2_TBLD:")
    stamp(s, 2)
    for t in range(2):
        s(f"ds_read_b128 v[{FR+4*t}:{FR+4*t+3}], v4 offset:{L_F32 + t*1024}", tag="f32")
    s(f"v_add_u32 v5, {L_F32}, v4")
    for t in range(2):
        s(f"ds_read_b128 v[{FN+4*t}:{FN+4*t+3}], v5 offset:{4096 + t*1024}", tag="f32")
        s(f"ds_read_b128 v[{FI+4*t}:{FI+4*t+3}], v5 offset:{2048 + t*1024}", tag="f32")
    s.wait_ds("f32"); s.wait_vm("in")
    for T in range(2):
        for t in range(2):
            M32(s, AR+16*T, xi(0,T,t), FR+4*t, t == 0); M32(s, AI+16*T, xi(0,T,t), FI+4*t, t == 0)
            M32(s, AR+16*T, xi(1,T,t), FN+4*t, False); M32(s, AI+16*T, xi(1,T,t), FR+4*t, False)
    stamp(s, 3)
    cmul_pass(s, L_T1, -1, None)
    s(f"v_add_u32 v5, {L_F64}, v4")
    def f64rd(U, T, t, buf, tag):
        b = FS + 12 * buf; o = ((U * 2 + T) * 2 + t) * 1024
        s(f"ds_read_b128 v[{b}:{b+3}], v5 offset:{o}", tag=tag)
        s(f"ds_read_b128 v[{b+4}:{b+7}], v5 offset:{o + 8192}", tag=tag)
        s(f"ds_read_b128 v[{b+8}:{b+11}], v5 offset:{o + 16384}", tag=tag)
    seq = [(U, T, t) for U in range(2) for T in range(2) for t in range(2)]
    f64rd(*seq[0], 0, "a0")
    for i, (U, T, t) in enumerate(seq):
        if i < 7: f64rd(*seq[i+1], (i + 1) & 1, f"a{i+1}")
        s.wait_ds(f"a{i}")
        b = FS + 12 * (i & 1); first = (T == 0 and t == 0)
        M32(s, AR+16*U, b, xi(0,T,t), first); M32(s, AI+16*U, b+4, xi(0,T,t), first)
        M32(s, AR+16*U, b+8, xi(1,T,t), False); M32(s, AI+16*U, b, xi(1,T,t), False)
    stamp(s, 4)
    s.wait_vm("w")
    for blk in range(8):
        U, g = blk >> 2, blk & 3
        for r in range(4):
            re, im, w = AR + 16*U + 4*g + r, AI + 16*U + 4*g + r, WR + 4*blk + r
            t1, t2 = 224 + r, 228 + r
            s(f"v_lshlrev_b32 v6, 16, v{w}\nv_and_b32 v7, 0xffff0000, v{w}")
            s(f"v_mul_f32 v{t1}, v{re}, v6\nv_mul_f32 v{t2}, v{im}, v6\nv_fma_f32 v{t1}, -v{im}, v7, v{t1}\nv_fmac_f32 v{t2}, v{re}, v7")
        t = g >> 1; o = 2 * (g & 1)
        s(f"v_cvt_pk_bf16_f32 v{xi(0,U,t)+o}, v224, v225\nv_cvt_pk_bf16_f32 v{xi(0,U,t)+o+1}, v226, v227")
        s(f"v_cvt_pk_bf16_f32 v{xi(1,U,t)+o}, v228, v229\nv_cvt_pk_bf16_f32 v{xi(1,U,t)+o+1}, v230, v231")
    seq = [(Tp, U, t) for Tp in range(2) for U in range(2) for t in range(2)]
    f64rd(*seq[0], 0, "b0")
    for i, (Tp, U, t) in enumerate(seq):
        if i < 7: f64rd(*seq[i+1], (i + 1) & 1, f"b{i+1}")
        s.wait_ds(f"b{i}")
        b = FS + 12 * (i & 1); first = (U == 0 and t == 0)
        M32(s, AR+16*Tp, xi(0,U,t), b, first); M32(s, AI+16*Tp, xi(1,U,t), b, first)
        M32(s, AR+16*Tp, xi(1,U,t), b+4, False); M32(s, AI+16*Tp, xi(0,U,t), b+8, False)
    stamp(s, 5)
    cmul_pass(s, L_T3, +1, None)
    for T in range(2):
        for t in range(2):
            M32(s, AR+16*T, xi(0,T,t), FR+4*t, t == 0); M32(s, AI+16*T, xi(1,T,t), FR+4*t, t == 0)
            M32(s, AR+16*T, xi(1,T,t), FI+4*t, False); M32(s, AI+16*T, xi(0,T,t), FN+4*t, False)
    s(f"s_sub_u32 s{sT0}, s{sW}, 4\ns_mul_i32 s{sT0}, s{sT0}, 4608\ns_add_u32 s{sT0}, s{sT0}, {L_BNC}")
    s(f"v_and_b32 v6, 31, v{vL}\nv_mul_u32_u24 v6, 144, v6\nv_lshrrev_b32 v7, 5, v{vL}\nv_lshl_add_u32 v6, v7, 3, v6\nv_add_u32 v6, s{sT0}, v6")
    s(f"v_lshrrev_b32 v7, 3, v{vL}\nv_mul_u32_u24 v7, 144, v7\nv_and_b32 v8, 7, v{vL}\nv_lshl_add_u32 v7, v8, 4, v7\nv_add_u32 v7, s{sT0}, v7")
    for part, A0, so, sr in ((0, AR, 50, sWS), (1, AI, 51, sWSI)):
        for T in range(2):
            for g in range(4):
                a = A0 + 16*T + 4*g; o = 224 + 2 * (g & 1) + 4 * (T & 1)
                s(f"v_cvt_pk_bf16_f32 v{o}, v{a}, v{a+1}\nv_cvt_pk_bf16_f32 v{o+1}, v{a+2}, v{a+3}")
                s(f"ds_write_b64 v6, v[{o}:{o+1}] offset:{64*T + 16*g}", tag=f"ow{part}")
        s.wait_ds(f"ow{part}")
        for i in range(4):
            s(f"ds_read_b128 v[{XI+16*part+4*i}:{XI+16*part+4*i+3}], v7 offset:{i*8*144}", tag=f"or{part}")
        s.wait_ds(f"or{part}")
        for i in range(4):
            s(f"buffer_store_dwordx4 v[{XI+16*part+4*i}:{XI+16*part+4*i+3}], v4, s[{sr}:{sr+3}], s{so} offen offset:{i*1024} sc1")
    stamp(s, 6)
    s("s_waitcnt vmcnt(0)")
    s(f"s_and_b32 s{sT0}, s44, 7\ns_lshl_b32 s{sT0}, s{sT0}, 5\nv_mov_b32 v5, 1\ns_mov_b64 exec, 1")
    s(f"buffer_atomic_add v5, off, s[{sDBG}:{sDBG+3}], s{sT0}")
    stamp_out(s, 8)
    s("s_endpgm")
    return s

def kernel(name="k2_kernel"):
    h = head()
    h(f"s_cmp_ge_u32 s{sW}, 4\ns_cbranch_scc1 K2_COL")
    g = Stream(); g.extend(h); g.extend(gemm_path())
    lines = finish(g)
    c = Stream(); c("K2_COL:"); c.extend(col_path())
    lines += finish(c)
    lines += ["K2_END:", "s_endpgm"]
    return f".globl {name}\n.p2align 8\n.type {name},@function\n{name}:\n" + "\n".join(lines) + "\n"
```

```python
from emit import *
from common import *

def raw(s, text):
    for line in text.split("\n"):
        line = line.strip()
        if line: s.append(Op(line, "raw"))

def gw_setup(k):
    s = Stream()
    s(f"s_lshl_b32 s{k.sGW}, s{k.sNI}, 3\ns_add_u32 s{k.sGW}, s{k.sGW}, s{k.sMI}\ns_lshl_b32 s{k.sGW}, s{k.sGW}, 3\ns_add_u32 s{k.sGW}, s{k.sGW}, s{k.sW}")
    return s

def wd_task(k, rnd):
    s = Stream(); L = f"SIDE_WD{rnd}"
    t, a, b, c = k.sT1, k.sT2, k.sT3, 81
    s(f"s_add_u32 s{t}, s{k.sGW}, {1728*rnd}")
    if rnd: s(f"s_cmp_ge_u32 s{t}, 2160\ns_cbranch_scc1 {L}")
    s(f"s_mul_hi_u32 s{a}, s{t}, {-(-(1 << 32)//54)}\ns_mul_i32 s{b}, s{a}, 54\ns_sub_u32 s{b}, s{t}, s{b}")
    s(f"s_mul_i32 s{c}, s{a}, 74\ns_add_u32 s{c}, s{c}, s{b}\ns_lshl_b32 s{c}, s{c}, 10\ns_add_u32 s{c}, s{c}, {WS_WB}")
    s(f"s_mul_i32 s{b}, s{b}, {32*1280}\ns_lshl_b32 s{a}, s{a}, 5\ns_add_u32 s{a}, s{a}, s{b}\ns_add_u32 s{b}, s{a}, {16*1280}")
    s(f"v_lshrrev_b32 v2, 4, v{k.vL}\nv_mul_u32_u24 v2, {4*1280}, v2\nv_and_b32 v3, 15, v{k.vL}\nv_lshl_add_u32 v2, v3, 1, v2")
    for j in range(8):
        raw(s, f"buffer_load_ushort v{84+j}, v2, s[{k.sWD}:{k.sWD+3}], s{a if j < 4 else b} offen offset:{(j&3)*1280}")
    raw(s, "s_waitcnt vmcnt(0)")
    for jj in range(4): s(f"v_lshl_or_b32 v{92+jj}, v{85+2*jj}, 16, v{84+2*jj}")
    s(f"v_lshlrev_b32 v3, 4, v{k.vL}")
    raw(s, f"buffer_store_dwordx4 v[92:95], v3, s[{k.sWS}:{k.sWS+3}], s{c} offen sc1")
    if rnd: s(f"{L}:")
    g = Stream(); g.group(s); return g

def wt_task(k, rnd):
    s = Stream(); L = f"SIDE_WT{rnd}"
    t, a, b, c = k.sT1, k.sT2, k.sT3, 81
    s(f"s_add_u32 s{t}, s{k.sGW}, {1728*rnd}")
    if rnd: s(f"s_cmp_ge_u32 s{t}, 2624\ns_cbranch_scc1 {L}")
    s(f"s_and_b32 s{a}, s{t}, 3\ns_lshl_b32 s{a}, s{a}, 3")
    s(f"s_bfe_u32 s{b}, s{t}, 0x30003\ns_lshl_b32 s{b}, s{b}, 3\ns_bfe_u32 s{c}, s{t}, 0x10002\ns_lshl_b32 s{c}, s{c}, 2\ns_add_u32 s{b}, s{b}, s{c}")
    s(f"s_lshl_b32 s{b}, s{b}, 5\ns_add_u32 s{a}, s{a}, s{b}\ns_mul_i32 s{a}, s{a}, 642")
    s(f"s_lshr_b32 s{b}, s{t}, 6\ns_lshl_b32 s{c}, s{b}, 4\ns_add_u32 s{a}, s{a}, s{c}")
    s(f"s_lshl_b32 s{b}, s{b}, 16\ns_bfe_u32 s{c}, s{t}, 0x30003\ns_lshl_b32 s{c}, s{c}, 10\ns_add_u32 s{b}, s{b}, s{c}")
    s(f"s_and_b32 s{c}, s{t}, 7\ns_lshl_b32 s{c}, s{c}, 7\ns_add_u32 s{b}, s{b}, s{c}\ns_add_u32 s{b}, s{b}, {WS_WT}")
    s(f"v_lshrrev_b32 v2, 3, v{k.vL}\nv_mul_u32_u24 v2, 642, v2\nv_and_b32 v3, 7, v{k.vL}\nv_lshl_add_u32 v2, v3, 1, v2")
    for r in range(4):
        raw(s, f"buffer_load_ushort v{84+r}, v2, s[{k.sWR}:{k.sWR+3}], s{a} offen")
        raw(s, f"buffer_load_ushort v{88+r}, v2, s[{k.sWI}:{k.sWI+3}], s{a} offen")
        if r < 3: s(f"s_add_u32 s{a}, s{a}, {32*642}")
    s(f"v_and_b32 v4, 7, v{k.vL}\nv_lshrrev_b32 v5, 3, v{k.vL}\nv_lshl_add_u32 v6, v4, 3, v5\nv_lshlrev_b32 v6, 2, v6")
    s(f"v_lshlrev_b32 v5, 13, v5\nv_lshl_add_u32 v5, v4, 4, v5")
    raw(s, "s_waitcnt vmcnt(0)")
    for r in range(4): s(f"v_lshl_or_b32 v{84+r}, v{88+r}, 16, v{84+r}")
    for r in range(4): raw(s, f"ds_bpermute_b32 v{92+r}, v6, v{84+r}")
    raw(s, "s_waitcnt lgkmcnt(0)")
    raw(s, f"buffer_store_dwordx4 v[92:95], v5, s[{k.sWS}:{k.sWS+3}], s{b} offen sc1")
    if rnd: s(f"{L}:")
    g = Stream(); g.group(s); return g

def g_task(k):
    s = Stream(); L = "SIDE_G"
    t, a, b, c = k.sGW, k.sT2, k.sT3, 81
    s(f"s_cmp_ge_u32 s{t}, 800\ns_cbranch_scc1 {L}")
    s(f"s_mul_hi_u32 s{a}, s{t}, {-(-(1 << 32)//20)}\ns_mul_i32 s{b}, s{a}, 20\ns_sub_u32 s{b}, s{t}, s{b}")
    s(f"s_mul_i32 s{c}, s{a}, 74\ns_add_u32 s{c}, s{c}, s{b}\ns_add_u32 s{c}, s{c}, 54\ns_lshl_b32 s{c}, s{c}, 10\ns_add_u32 s{c}, s{c}, {WS_WB}")
    s(f"s_lshl_b32 s{a}, s{a}, 4\ns_lshl_b32 s{b}, s{b}, 4")
    s(f"v_and_b32 v2, 15, v{k.vL}\nv_add_u32 v2, s{a}, v2\nv_cvt_f32_u32 v3, v2")
    s(f"v_lshrrev_b32 v4, 4, v{k.vL}\nv_lshl_add_u32 v4, v4, 2, s{b}")
    s(f"s_mov_b32 s{a}, {f2h(-640.0)}")
    for jj in range(4):
        s(f"v_add_u32 v5, {jj}, v4\nv_cvt_f32_u32 v5, v5\nv_mul_f32 v5, v5, v3")
        s(f"v_mul_f32 v6, {INV640}, v5\nv_floor_f32 v6, v6\nv_fma_f32 v6, v6, s{a}, v5\nv_mul_f32 v6, {INV640}, v6")
        s(f"v_cos_f32 v7, v6\nv_sin_f32 v8, v6\nv_add_f32 v7, v7, v7\nv_mul_f32 v8, -2.0, v8\nv_cvt_pk_bf16_f32 v{92+jj}, v7, v8")
    s(f"v_and_b32 v5, 1, v2\nv_lshlrev_b32 v5, 31, v5\nv_or_b32 v5, 0x3f803f80, v5")
    s(f"v_cmp_eq_u32 vcc, 0, v4\nv_cndmask_b32 v92, v92, v5, vcc")
    s(f"v_lshlrev_b32 v3, 4, v{k.vL}")
    raw(s, f"buffer_store_dwordx4 v[92:95], v3, s[{k.sWS}:{k.sWS+3}], s{c} offen sc1")
    s(f"{L}:")
    g = Stream(); g.group(s); return g

def all_tasks(k):
    s = Stream()
    s.extend(gw_setup(k))
    s.extend(g_task(k))
    for r in range(2): s.extend(wd_task(k, r))
    for r in range(2): s.extend(wt_task(k, r))
    return s
```

```python
import sys
from common import *
import k1, side, k2

HDR = open("cdna_kernels/%s.s.ref" % NAME).read().split("; Override launch")[0]

def build(parts=("k1", "k2")):
    L = []
    body = ""
    desc = ""
    if "k1" in parts:
        L.append(f"; @launch kernel=k1_kernel grid=(256,1,1) block=(512,1,1) lds={k1.LDS_BYTES}")
        body += k1.kernel(side=side.all_tasks(k1)); desc += descriptor("k1_kernel")
    if "k2" in parts:
        L.append(f"; @launch kernel=k2_kernel grid=(256,1,1) block=(512,1,1) lds={k2.LDS_BYTES}")
        body += k2.kernel(); desc += descriptor("k2_kernel")
    txt = HDR + "\n".join(L) + '\n.amdgcn_target "amdgcn-amd-amdhsa--gfx950"\n.text\n' + body + '.section .rodata,"a"\n' + desc
    return txt

if __name__ == "__main__":
    out = sys.argv[1] if len(sys.argv) > 1 else "out.s"
    if "--stamps" in sys.argv: k1.STAMPS = True; k2.STAMPS = True
    open(out, "w").write(build())
```

```python
import re

class Op:
    __slots__ = ("text", "kind", "tag")
    def __init__(self, text, kind, tag=None):
        self.text, self.kind, self.tag = text, kind, tag
    def __repr__(self): return f"Op({self.text!r},{self.kind},{self.tag})"

def kind_of(text):
    m = text.split()[0]
    if m.startswith("v_mfma"): return "mfma"
    if m.startswith(("buffer_", "global_")): return "vm"
    if m.startswith("ds_"): return "ds"
    if m.startswith("v_"): return "valu"
    if m.startswith("s_"): return "salu"
    return "other"

class Stream(list):
    def __call__(self, text, tag=None):
        for line in text.split("\n"):
            line = line.strip()
            if not line: continue
            self.append(Op(line, "label" if line.endswith(":") else kind_of(line), tag))
        return self
    def wait_vm(self, tag): self.append(Op("", "wait_vm", tag)); return self
    def wait_ds(self, tag): self.append(Op("", "wait_ds", tag)); return self
    def raw(self, text): self.append(Op(text, "raw")); return self
    def opt(self, text, tag=None): self.append(Op(text, "optvm", tag)); return self
    def wait_opt(self, tag): self.append(Op("", "wait_opt", tag)); return self
    def group(self, sub):
        self.append(Op("", "group", list(sub))); return self

def flatten(ops):
    out = Stream()
    for op in ops:
        if op.kind == "group": out.extend(flatten(op.tag))
        else: out.append(op)
    return out

def interleave(main, fill, per=1, start=0, kinds=("mfma",)):
    out = Stream(); fi = 0; n = 0
    for op in main:
        out.append(op)
        if op.kind in kinds:
            if n >= start:
                k = per(n) if callable(per) else per
                for _ in range(k):
                    if fi < len(fill):
                        out.append(fill[fi]); fi += 1
                        while out[-1].kind in ("wait_vm", "wait_ds") and fi < len(fill):
                            out.append(fill[fi]); fi += 1
            n += 1
    out.extend(fill[fi:])
    return out

class Resolver:
    def __init__(self):
        self.vm_n = 0; self.ds_n = 0; self.vm_tag = {}; self.ds_tag = {}
        self.vm_done = 0; self.ds_done = 0
        self.opt_tag = {}
    def resolve(self, ops):
        out = []
        for op in ops:
            if op.kind == "vm":
                self.vm_n += 1
                if op.tag is not None: self.vm_tag[op.tag] = self.vm_n
                out.append(op.text)
            elif op.kind == "ds":
                self.ds_n += 1
                if op.tag is not None: self.ds_tag[op.tag] = self.ds_n
                out.append(op.text)
            elif op.kind == "wait_vm":
                idx = self.vm_n if op.tag == "all" else self.vm_tag[op.tag]
                if idx > self.vm_done:
                    n = min(self.vm_n - idx, 63)
                    out.append(f"s_waitcnt vmcnt({n})")
                    self.vm_done = self.vm_n - n
            elif op.kind == "wait_ds":
                idx = self.ds_n if op.tag == "all" else self.ds_tag[op.tag]
                if idx > self.ds_done:
                    n = min(self.ds_n - idx, 15)
                    out.append(f"s_waitcnt lgkmcnt({n})")
                    self.ds_done = self.ds_n - n
            elif op.kind == "optvm":
                if op.tag is not None: self.opt_tag[op.tag] = self.vm_n
                out.append(op.text)
            elif op.kind == "wait_opt":
                out.append(f"s_waitcnt vmcnt({min(self.vm_n - self.opt_tag[op.tag], 63)})")
            elif op.kind == "raw":
                out.append(op.text)
            else:
                out.append(op.text)
                if op.text.startswith("s_waitcnt"):
                    m = re.search(r"vmcnt\((\d+)\)", op.text)
                    if m: self.vm_done = max(self.vm_done, self.vm_n - int(m.group(1)))
                    m = re.search(r"lgkmcnt\((\d+)\)", op.text)
                    if m: self.ds_done = max(self.ds_done, self.ds_n - int(m.group(1)))
        return out

_REG = re.compile(r"(?<![\w.])(-?\|?)(v|s|a)(\d+|\[(\d+):(\d+)\])")
TRANS = ("v_exp_f32", "v_log_f32", "v_rcp_f32", "v_rsq_f32", "v_sqrt_f32", "v_sin_f32", "v_cos_f32", "v_rcp_iflag_f32")

def regs(tok):
    tok = tok.strip()
    out = set()
    for m in _REG.finditer(tok):
        c = m.group(2)
        if m.group(4) is not None:
            out |= {(c, i) for i in range(int(m.group(4)), int(m.group(5)) + 1)}
        else:
            out.add((c, int(m.group(3))))
    if re.search(r"\bvcc\b", tok): out |= {("s", "vcc")}
    if re.search(r"\bexec\b", tok): out |= {("s", "exec")}
    if re.search(r"\bm0\b", tok): out |= {("s", "m0")}
    return out

NO_DST = ("s_waitcnt", "s_barrier", "s_nop", "s_cbranch", "s_branch", "s_endpgm", "s_setprio", "s_sleep", "s_cmp", "s_bitcmp")

def parse(text):
    t = text.split(";")[0].strip()
    parts = t.split(None, 1)
    mn = parts[0]
    ops = [o.strip() for o in re.split(r",(?![^\[]*\])", parts[1])] if len(parts) > 1 else []
    if mn.startswith(NO_DST): return mn, set(), set().union(*[regs(o) for o in ops]) if ops else set()
    if mn.startswith(("buffer_store", "global_store", "ds_write", "ds_add", "buffer_atomic", "global_atomic")):
        src = set().union(*[regs(o) for o in ops])
        return mn, set(), src
    if mn.startswith(("buffer_load", "global_load")) and re.search(r"\blds\b", t):
        return mn, set(), set().union(*[regs(o) for o in ops]) | {("s", "m0")}
    dst = regs(ops[0]) if ops else set()
    src = set().union(*[regs(o) for o in ops[1:]]) if len(ops) > 1 else set()
    if mn.startswith("v_cmp") and not mn.startswith("v_cmpx"):
        pass
    if mn.startswith(("v_add_co", "v_sub_co", "v_addc_co", "v_subb_co")):
        dst |= regs(ops[1]); src = set().union(*[regs(o) for o in ops[2:]])
    if mn.startswith(("v_fmac", "v_dot2c", "v_pk_fmac")): src |= dst
    if mn.startswith("v_permlane") and "swap" in mn:
        dst |= regs(ops[1]); src |= regs(ops[0])
    if mn.startswith("v_cndmask") and len(ops) == 3: src |= {("s", "vcc")}
    if mn.endswith("_dpp") or "row_" in t or "quad_perm" in t: src |= dst if "bound_ctrl" not in t else set()
    if mn.startswith(("v_writelane",)): src |= dst
    if mn.startswith("s_and_saveexec") or mn.startswith("s_or_saveexec"): dst |= {("s", "exec")}; src |= {("s", "exec")}
    return mn, dst, src

def is_valu(mn): return mn.startswith("v_") and not mn.startswith("v_mfma")
def is_vmem(mn): return mn.startswith(("buffer_", "global_"))
def is_ds(mn): return mn.startswith("ds_")
def mfma_passes(mn): return 8 if "32x32x16" in mn else 4

def states(text):
    m = re.match(r"s_nop\s+(\d+)", text)
    return int(m.group(1)) + 1 if m else 1

def pad_hazards(lines, lookback=24):
    out = []; hist = []
    added = 0
    for text in lines:
        s = text.split(";")[0].strip()
        if not s or s.endswith(":") or s.startswith("."):
            out.append(text); continue
        mn, dst, src = parse(s)
        need = 0
        dist = 0
        isdpp = ("row_" in s or "quad_perm" in s or mn.endswith("_dpp"))
        ops_split = [o.strip() for o in re.split(r",(?![^\[]*\])", s.split(None, 1)[1])] if " " in s else []
        for (pmn, pdst, psrc, ptext, pops) in reversed(hist):
            if dist >= lookback: break
            req = 0
            if is_valu(pmn):
                vd = {r for r in pdst if r[0] == "v"}; sd = {r for r in pdst if r[0] == "s"}
                if mn.startswith("v_mfma") and vd & src: req = max(req, 2)
                if mn.startswith(("v_readlane", "v_readfirstlane")) and vd & src: req = max(req, 1)
                if isdpp and vd & src: req = max(req, 2)
                if mn.startswith("v_permlane") and vd & src: req = max(req, 2)
                if pmn.startswith(TRANS) and is_valu(mn) and vd & src: req = max(req, 1)
                if sd & src:
                    if is_vmem(mn): req = max(req, 5)
                    elif mn.startswith(("v_readlane", "v_writelane")): req = max(req, 4)
                    elif is_valu(mn) or mn.startswith("v_mfma"): req = max(req, 2)
                    elif mn.startswith("s_"): req = max(req, 1)
                if ("s", "exec") in pdst:
                    if isdpp: req = max(req, 5)
                    if mn.startswith("v_mfma") or mn.startswith(("v_readlane", "v_readfirstlane", "v_permlane")): req = max(req, 4)
            if pmn.startswith("v_mfma"):
                p = mfma_passes(pmn)
                far = {4: 8, 8: 12}[p]
                if mn.startswith("v_mfma"):
                    cdst = regs(ops_split[0]); ca = regs(ops_split[1]) | regs(ops_split[2]); cc = regs(ops_split[3])
                    if pdst & ca: req = max(req, far)
                    if pdst & cc and not (pdst == cc and mfma_passes(mn) == p): req = max(req, {4: 6, 8: 10}[p])
                    if pdst & cdst and not (pdst == cdst): req = max(req, {4: 6, 8: 10}[p])
                else:
                    if pdst & (src | dst): req = max(req, far)
                    pc = regs(pops[3])
                    if is_valu(mn) and pc & dst: req = max(req, {4: 3, 8: 7}[p])
            if is_vmem(pmn) and re.search(r"store_dwordx[34]", pmn):
                data = regs(pops[0])
                if data & dst: req = max(req, 2 if is_valu(mn) else 1)
            if pmn.startswith("s_") and ("s", "m0") in pdst and ("s", "m0") in src and (is_vmem(mn) or is_ds(mn)): req = max(req, 1)
            if req > dist: need = max(need, req - dist)
            dist += states(ptext)
        while need > 0:
            k = min(need, 16)
            out.append(f"s_nop {k-1}"); hist.append(("s_nop", set(), set(), f"s_nop {k-1}", [])); need -= k; added += 1
        out.append(text)
        hist.append((mn, dst, src, s, ops_split))
        if len(hist) > 64: hist = hist[-48:]
    return out, added

def merge(main, fills, front=True, on="mfma"):
    n = sum(1 for o in main if o.kind == on)
    units = []
    for f in fills:
        u = []; cur = []
        for op in f:
            if not cur and u and op.text.startswith(("s_cselect", "s_addc", "s_subb", "s_cbranch_scc", "v_cndmask")):
                u[-1].append(op); continue
            cur.append(op)
            if op.kind in ("wait_vm", "wait_ds", "wait_opt"): continue
            u.append(cur); cur = []
        if cur: u.append(cur)
        units.append(u)
    out = Stream()
    pos = [0] * len(units)
    k = 0
    for op in main:
        out.append(op)
        if op.kind != on: continue
        k += 1
        for i, u in enumerate(units):
            span = max(1, (3 * n) // 4) if (i == 0 and front) else n
            tgt = min(len(u), -(-len(u) * k // span))
            while pos[i] < tgt:
                out.extend(u[pos[i]]); pos[i] += 1
    for i, u in enumerate(units):
        while pos[i] < len(u): out.extend(u[pos[i]]); pos[i] += 1
    return out


def finish(stream):
    lines = Resolver().resolve(flatten(stream))
    lines, added = pad_hazards(lines)
    return lines
```

```python
from emit import *
from common import *

SEQ = [0, 5, 1, 6, 2, 7, 3, 8, 4, 9]

sX, sWG, sWU, sWS, sWD, sWR, sWI, sDBG = 8, 12, 16, 20, 24, 28, 32, 36
sW, sMI, sNI, sWM, sWN = 40, 41, 42, 43, 44
sAI = 45
sALDS, sBLDS, sT0, sT1, sT2, sT3 = 49, 50, 52, 53, 54, 55
sBK = 51
sGW = 76
sMASK = 78
vL = 1
vA0, vA1, vA0h, vA1h, vB0, vB1, vGA0, vGA1, vGB = 10, 11, 12, 13, 14, 15, 16, 17, 18
SET = [20, 52]
ACC = 128
LDS_B = 98304
LDS_ST = 147456
LDS_COL = LDS_ST + 2048
LDS_CP = LDS_ST + 4096
LDS_BYTES = LDS_ST + 8192

STAMPS = False
OPT = {}
WS_STAMP = 0x1590000
def stamp(s, i):
    if STAMPS: s(f"s_memrealtime s[{84+2*i}:{85+2*i}]")
def stamp_out(s, n):
    if not STAMPS: return
    s("s_waitcnt vmcnt(0)"); stamp(s, n - 1); s("s_waitcnt lgkmcnt(0)")
    s(f"s_lshl_b32 s{sT1}, s2, 3\ns_add_u32 s{sT1}, s{sT1}, s{sW}\ns_lshl_b32 s{sT1}, s{sT1}, 5\ns_add_u32 s{sT1}, s{sT1}, {WS_STAMP}")
    for i in range(n): s(f"v_mov_b32 v{20+i}, s{84+2*i}")
    s("s_mov_b64 exec, 1")
    s(f"buffer_store_dwordx4 v[20:23], off, s[{sWS}:{sWS+3}], s{sT1}")
    s(f"buffer_store_dwordx4 v[24:27], off, s[{sWS}:{sWS+3}], s{sT1} offset:16")

def head():
    s = Stream()
    if STAMPS: s("s_memrealtime s[84:85]")
    s("s_cmp_ge_u32 s2, 256\ns_cbranch_scc1 K1_END")
    s("s_load_dwordx4 s[56:59], s[0:1], 0\ns_load_dwordx2 s[60:61], s[0:1], 16\ns_load_dwordx4 s[64:67], s[0:1], 32")
    s("s_load_dwordx2 s[68:69], s[0:1], 48\ns_load_dwordx4 s[72:75], s[0:1], 64")
    s(f"v_and_b32 v{vL}, 63, v0\nv_lshrrev_b32 v2, 6, v0")
    s("s_and_b32 s3, s2, 7\ns_lshr_b32 s4, s2, 3")
    s(f"v_readfirstlane_b32 s{sW}, v2")
    s(f"s_and_b32 s5, s3, 1\ns_lshl_b32 s5, s5, 2\ns_and_b32 s6, s4, 3\ns_add_u32 s{sMI}, s5, s6")
    s(f"s_lshr_b32 s5, s3, 1\ns_lshl_b32 s5, s5, 3\ns_lshr_b32 s6, s4, 2\ns_add_u32 s{sNI}, s5, s6")
    s(f"s_lshr_b32 s{sWM}, s{sW}, 1\ns_and_b32 s{sWN}, s{sW}, 1")
    s(f"s_lshl_b32 s{sALDS}, s{sW}, 12")
    s(f"s_lshl_b32 s{sBLDS}, s{sW}, 10\ns_add_u32 s{sBLDS}, s{sBLDS}, {LDS_B}")
    s("s_waitcnt lgkmcnt(0)")
    if STAMPS: s("s_memrealtime s[86:87]")
    srd(s, sX, 56, S * D * 2)
    srd(s, sWR, 58, S * 321 * 2)
    srd(s, sWI, 60, S * 321 * 2)
    srd(s, sWG, 64, D * F * 2)
    srd(s, sWU, 66, D * F * 2)
    srd(s, sWD, 68, F * D * 2)
    srd(s, sDBG, 72, 256)
    srd(s, sWS, 74, WS_SIZE)
    return s

def lds_addr_setup(dft):
    s = Stream()
    s(f"v_and_b32 v2, 15, v{vL}\nv_lshrrev_b32 v3, 4, v{vL}")
    s(f"v_lshrrev_b32 v4, 1, v2\nv_xor_b32 v4, v4, v3\nv_lshlrev_b32 v4, 4, v4")
    s(f"s_lshl_b32 s{sT0}, s{sWM}, 13")
    s(f"v_lshl_add_u32 v4, v2, 7, v4\nv_add_u32 v{vA0}, s{sT0}, v4\nv_xor_b32 v{vA1}, 64, v{vA0}")
    s(f"v_add_u32 v{vA0h}, 0x10000, v{vA0}\nv_add_u32 v{vA1h}, 0x10000, v{vA1}")
    if not dft:
        s(f"v_lshrrev_b32 v4, 2, v2\nv_lshl_add_u32 v4, v3, 3, v4")
        s(f"v_bfe_u32 v5, v{vL}, 3, 1\nv_and_b32 v6, 1, v3\nv_lshl_or_b32 v5, v6, 1, v5")
        s(f"s_lshl_b32 s{sT0}, s{sWN}, 1\nv_xor_b32 v5, s{sT0}, v5")
        s(f"v_lshlrev_b32 v5, 5, v5\nv_lshl_add_u32 v4, v4, 7, v5")
        s(f"v_and_b32 v6, 3, v2\nv_lshl_add_u32 v4, v6, 3, v4")
        s(f"v_add_u32 v{vB0}, {LDS_B}, v4\nv_xor_b32 v{vB1}, 32, v{vB0}")
    else:
        s(f"s_lshl_b32 s{sT0}, s{sWN}, 11\ns_add_u32 s{sT0}, s{sT0}, {LDS_B}")
        s(f"v_lshlrev_b32 v4, 4, v{vL}\nv_add_u32 v{vB0}, s{sT0}, v4")
    return s

def dma_addr_setup(dft):
    s = Stream()
    s(f"v_and_b32 v2, 7, v{vL}\nv_lshrrev_b32 v3, 4, v{vL}\nv_xor_b32 v2, v2, v3\nv_lshlrev_b32 v2, 4, v2")
    if not dft:
        s(f"v_lshrrev_b32 v4, 3, v{vL}\nv_mul_u32_u24 v4, 1280, v4\nv_add_u32 v{vGA0}, v4, v2")
        s(f"s_lshl_b32 s{sT0}, s{sMI}, 8\ns_lshl_b32 s{sT1}, s{sW}, 5\ns_add_u32 s{sT0}, s{sT0}, s{sT1}\ns_mul_i32 s{sAI}, s{sT0}, 1280")
        for i in range(1, 4): s(f"s_add_u32 s{sAI+i}, s{sAI}, {8*i*1280}")
        s(f"v_bfe_u32 v4, v{vL}, 4, 1\ns_and_b32 s{sT0}, s{sW}, 1\ns_lshl_b32 s{sT0}, s{sT0}, 1\nv_or_b32 v4, s{sT0}, v4")
        s(f"v_lshlrev_b32 v4, 1, v4\nv_and_b32 v5, 7, v{vL}\nv_xor_b32 v4, v4, v5\nv_lshlrev_b32 v4, 4, v4")
        s(f"v_lshrrev_b32 v5, 3, v{vL}\ns_lshl_b32 s{sT0}, s{sW}, 3\nv_add_u32 v5, s{sT0}, v5\nv_mul_u32_u24 v5, 3456, v5")
        s(f"s_lshl_b32 s{sT0}, s{sNI}, 7\nv_add3_u32 v{vGB}, v5, v4, s{sT0}")
    else:
        s(f"v_bfe_u32 v4, v{vL}, 3, 2\nv_lshlrev_b32 v4, 6, v4\nv_lshrrev_b32 v5, 5, v{vL}\nv_add_u32 v4, v4, v5")
        s(f"v_mul_u32_u24 v4, 1280, v4\nv_add_u32 v{vGA0}, v4, v2")
        s(f"s_and_b32 s{sT0}, s{sMI}, 1\ns_lshl_b32 s{sT0}, s{sT0}, 5")
        s(f"s_bfe_u32 s{sT1}, s{sMI}, 0x10001\ns_lshl_b32 s{sT1}, s{sT1}, 8\ns_add_u32 s{sT0}, s{sT0}, s{sT1}")
        s(f"s_lshr_b32 s{sT1}, s{sMI}, 2\ns_lshl_b32 s{sT1}, s{sT1}, 10\ns_add_u32 s{sT0}, s{sT0}, s{sT1}")
        s(f"s_lshl_b32 s{sT1}, s{sWM}, 3\ns_add_u32 s{sT0}, s{sT0}, s{sT1}\ns_lshl_b32 s{sT1}, s{sWN}, 2\ns_add_u32 s{sT0}, s{sT0}, s{sT1}")
        s(f"s_mul_i32 s{sAI}, s{sT0}, 1280")
        for i in range(1, 4): s(f"s_add_u32 s{sAI+i}, s{sAI}, {(512*(i>>1) + 2*(i&1))*1280}")
    s(f"v_xor_b32 v{vGA1}, 64, v{vGA0}")
    return s

def dma_stage(b, dft):
    kb = SEQ[b]; sg = b % 3
    groups = []
    for i in range(4):
        g = Stream()
        g(f"s_add_u32 m0, s{sALDS}, {sg*32768 + i*1024}\ns_add_u32 s{sT0}, s{sAI+i}, {kb*128}")
        g(f"buffer_load_dwordx4 v{vGA0 + (i&1)}, s[{sX}:{sX+3}], s{sT0} offen lds", tag=f"stage{b}")
        groups.append(g)
    if not dft:
        for mat, srdn in ((0, sWG), (1, sWU)):
            g = Stream()
            g(f"s_add_u32 m0, s{sBLDS}, {sg*16384 + mat*8192}\ns_mov_b32 s{sT0}, {kb*64*3456}")
            g(f"buffer_load_dwordx4 v{vGB}, s[{srdn}:{srdn+3}], s{sT0} offen lds", tag=f"stage{b}")
            groups.append(g)
    return groups

def frag_reads(u, dft):
    b, ks = u >> 1, u & 1
    sg = b % 3; st = SET[u & 1]
    s = Stream()
    va = (vA0, vA1)[ks] if sg < 2 else (vA0h, vA1h)[ks]
    aoff = (sg % 2) * 32768 if sg < 2 else 0
    A = [f"ds_read_b128 v[{st+4*mt}:{st+4*mt+3}], v{va} offset:{aoff + mt*2048}" for mt in range(4)]
    B = []
    if not dft:
        for mat in range(2):
            for a in range(2):
                r = st + 16 + 4 * (2 * mat + a)
                for jh in range(2):
                    B.append(f"ds_read_b64_tr_b16 v[{r+2*jh}:{r+2*jh+1}], v{vB0 + a} offset:{sg*16384 + mat*8192 + ks*4096 + jh*512}")
    else:
        buf = (b >> 1) & 1
        for nt in range(4):
            part, gk = nt >> 1, nt & 1
            r = st + 16 + 4 * nt
            B.append(f"ds_read_b128 v[{r}:{r+3}], v{vB0} offset:{buf*16384 + ks*8192 + part*4096 + gk*1024}")
    order = []
    if not dft:
        order = [A[0], B[0], B[1], A[1], B[2], B[3], A[2], B[4], B[5], A[3], B[6], B[7]]
    else:
        order = [A[0], B[0], A[1], B[1], A[2], B[2], A[3], B[3]]
    for t in order: s(t, tag=f"rd{u}")
    return s

def mfmas(u, dft):
    first = (u == 0) or (dft and u == 2)
    st = SET[u & 1]
    s = Stream()
    hi = dft and SEQ[u >> 1] >= 5
    pairs = sorted([(mt, nt) for mt in range(4) for nt in range(4)], key=lambda p: (max(p), p[0] + p[1]))
    for mt, nt in pairs:
        if not dft:
            acc = ACC + 32 * (nt >> 1) + 4 * (2 * mt + (nt & 1))
            s(f"v_mfma_f32_16x16x32_bf16 v[{acc}:{acc+3}], v[{st+16+4*nt}:{st+19+4*nt}], v[{st+4*mt}:{st+4*mt+3}], {'0' if first else f'v[{acc}:{acc+3}]'}")
        else:
            acc = ACC + (64 if hi else 0) + 4 * (4 * mt + nt)
            s(f"v_mfma_f32_16x16x32_bf16 v[{acc}:{acc+3}], v[{st+4*mt}:{st+4*mt+3}], v[{st+16+4*nt}:{st+19+4*nt}], {'0' if first else f'v[{acc}:{acc+3}]'}")
    return s

def stats_loads(dft):
    s = Stream()
    s(f"s_lshl_b32 s{sT1}, s{sMI}, 8\ns_lshl_b32 s{sT2}, s{sNI}, 3\ns_add_u32 s{sT1}, s{sT1}, s{sT2}\ns_add_u32 s{sT1}, s{sT1}, s{sW}")
    s(f"s_mul_i32 s{sT2}, s{sT1}, 1280\ns_lshl_b32 s77, s{sT1}, 3")
    s(f"v_lshlrev_b32 v2, 4, v{vL}\nv_lshlrev_b32 v3, 2, v{vL}")
    s(f"buffer_load_dwordx4 v[116:119], v2, s[{sX}:{sX+3}], s{sT2} offen", tag="rowld")
    s(f"buffer_load_dword v120, v3, s[{sX}:{sX+3}], s{sT2} offen offset:1024", tag="rowld")
    if not dft:
        s(f"v_lshrrev_b32 v4, 5, v{vL}\nv_mul_u32_u24 v4, 3456, v4\nv_and_b32 v5, 31, v{vL}\nv_lshl_add_u32 v4, v5, 2, v4")
        s(f"s_mul_i32 s{sT2}, s{sMI}, 80\ns_mul_i32 s{sT3}, s{sW}, 10\ns_add_u32 s{sT2}, s{sT2}, s{sT3}\ns_mul_i32 s{sT2}, s{sT2}, 3456")
        s(f"s_lshl_b32 s{sT3}, s{sNI}, 7\ns_add_u32 s{sT2}, s{sT2}, s{sT3}")
        for i in range(5):
            s(f"buffer_load_dword v{92+i}, v4, s[{sWG}:{sWG+3}], s{sT2} offen", tag="colld")
            s(f"buffer_load_dword v{97+i}, v4, s[{sWU}:{sWU+3}], s{sT2} offen", tag="colld")
            if i < 4: s(f"s_add_u32 s{sT2}, s{sT2}, {2*3456}")
    return s

def row_stats():
    s = Stream()
    s.wait_vm("rowld")
    s("v_mov_b32 v122, 0\nv_mov_b32 v123, 0")
    for r in range(116, 121):
        s(f"v_lshlrev_b32 v2, 16, v{r}\nv_and_b32 v3, 0xffff0000, v{r}")
        s("v_add_f32 v122, v122, v2\nv_fmac_f32 v123, v2, v2\nv_add_f32 v122, v122, v3\nv_fmac_f32 v123, v3, v3")
    for ctl in ("row_shr:1 row_mask:0xf bank_mask:0xf bound_ctrl:0", "row_shr:2 row_mask:0xf bank_mask:0xf bound_ctrl:0",
                "row_shr:4 row_mask:0xf bank_mask:0xf bound_ctrl:0", "row_shr:8 row_mask:0xf bank_mask:0xf bound_ctrl:0",
                "row_bcast:15 row_mask:0xa bank_mask:0xf", "row_bcast:31 row_mask:0xc bank_mask:0xf"):
        s(f"v_add_f32_dpp v122, v122, v122 {ctl}\nv_add_f32_dpp v123, v123, v123 {ctl}")
    s(f"v_mul_f32 v122, {INV640}, v122\nv_mul_f32 v123, {INV640}, v123")
    s("v_fma_f32 v123, -v122, v122, v123\nv_max_f32 v123, 0, v123")
    s("v_cvt_pk_bf16_f32 v122, v122, v123\nv_and_b32 v123, 0xffff0000, v122\nv_lshlrev_b32 v122, 16, v122")
    s("v_add_f32 v123, 0x3727c5ac, v123\nv_cvt_pk_bf16_f32 v123, v123, v123\nv_lshlrev_b32 v123, 16, v123")
    s("v_sqrt_f32 v123, v123\nv_cvt_pk_bf16_f32 v123, v123, v123\nv_lshlrev_b32 v123, 16, v123\nv_rcp_f32 v123, v123")
    g = Stream()
    g(f"s_add_u32 s77, s77, {WS_STAT}\ns_lshl_b64 exec, 1, 63")
    g(f"buffer_store_dwordx2 v[122:123], off, s[{sWS}:{sWS+3}], s77 sc1", tag="pub")
    g("s_mov_b64 exec, -1")
    s.group(g)
    return s

def col_stats():
    s = Stream()
    if True:
        s.wait_vm("colld")
        s("v_mov_b32 v2, 0\nv_mov_b32 v3, 0\nv_mov_b32 v4, 0\nv_mov_b32 v5, 0")
        for i in range(5):
            s(f"v_lshlrev_b32 v6, 16, v{92+i}\nv_and_b32 v7, 0xffff0000, v{92+i}\nv_add_f32 v2, v2, v6\nv_add_f32 v3, v3, v7")
            s(f"v_lshlrev_b32 v6, 16, v{97+i}\nv_and_b32 v7, 0xffff0000, v{97+i}\nv_add_f32 v4, v4, v6\nv_add_f32 v5, v5, v7")
        s("v_permlane32_swap_b32 v2, v4\nv_permlane32_swap_b32 v3, v5\nv_add_f32 v2, v2, v4\nv_add_f32 v3, v3, v5")
        s(f"s_lshl_b32 s{sT1}, s{sW}, 9\ns_add_u32 s{sT1}, s{sT1}, {LDS_CP}\nv_lshlrev_b32 v6, 3, v{vL}\nv_add_u32 v6, s{sT1}, v6")
        s("ds_write_b64 v6, v[2:3]", tag="cpw")
    return s

def colsum_publish():
    s = Stream()
    s(f"v_and_b32 v84, 15, v{vL}\nv_lshrrev_b32 v85, 4, v{vL}\ns_lshl_b32 s{sT1}, s{sW}, 6")
    s(f"v_lshlrev_b32 v86, 9, v85\nv_lshl_add_u32 v86, v84, 2, v86\ns_add_u32 s{sT2}, s{sT1}, {LDS_CP}\nv_add_u32 v86, s{sT2}, v86")
    s("ds_read_b32 v87, v86", tag="cpr"); s("ds_read_b32 v88, v86 offset:2048", tag="cpr")
    s(f"s_lshl_b32 s{sT2}, s{sNI}, 12\ns_lshl_b32 s{sT3}, s{sMI}, 9\ns_add_u32 s{sT2}, s{sT2}, s{sT3}\ns_add_u32 s{sT2}, s{sT2}, s{sT1}\ns_add_u32 s80, s{sT2}, {WS_CPART}")
    s(f"v_lshlrev_b32 v89, 2, v84")
    s.wait_ds("cpr")
    s("v_add_f32 v87, v87, v88\nv_mov_b32 v88, v87\nv_permlane16_swap_b32 v88, v87\nv_add_f32 v87, v87, v88")
    s("v_mov_b32 v88, v87\nv_permlane32_swap_b32 v88, v87\nv_add_f32 v87, v87, v88")
    g = Stream()
    g("s_mov_b64 exec, 0xffff")
    g(f"buffer_store_dword v87, v89, s[{sWS}:{sWS+3}], s80 offen sc1", tag="pub")
    g("s_mov_b64 exec, -1")
    s.group(g)
    return s

sOOB0 = 68
def leader_setup():
    s = Stream()
    s(f"s_cmp_eq_u32 s{sW}, 0\ns_cselect_b32 s{sOOB0}, 0, 0x40000000")
    return s

def arrive():
    g = Stream()
    g(f"s_and_b32 s{sT1}, s2, 7\ns_lshl_b32 s{sT1}, s{sT1}, 5\ns_add_u32 s{sT1}, s{sT1}, s{sOOB0}\nv_mov_b32 v126, 1\ns_mov_b64 exec, 1")
    g(f"buffer_atomic_add v126, off, s[{sDBG}:{sDBG+3}], s{sT1}")
    g("s_mov_b64 exec, -1")
    s = Stream(); s.group(g)
    return s

def poll_issue():
    s = Stream()
    s(f"v_and_b32 v116, 7, v{vL}\nv_lshlrev_b32 v116, 5, v116")
    s(f"buffer_load_dword v117, v116, s[{sDBG}:{sDBG+3}], s{sOOB0} offen sc1", tag="poll")
    return s

def poll_check():
    g = Stream()
    g.wait_vm("poll")
    g(f"s_cmp_lg_u32 s{sW}, 0\ns_cbranch_scc1 K1_SPUN_\\V\nv_cmp_ne_u32 vcc, 32, v117\ns_cbranch_vccnz K1_SPIN_\\V\nK1_SPUN_\\V:")
    s = Stream(); s.group(g)
    return s

def spin_block():
    s = Stream()
    s(f"K1_SPIN_\\V:\ns_mov_b32 s{sT1}, 0\nK1_SPINL_\\V:\ns_sleep 8")
    s.append(Op(f"buffer_load_dword v117, v116, s[{sDBG}:{sDBG+3}], 0 offen sc1", "raw"))
    s(f"s_add_u32 s{sT1}, s{sT1}, 1"); s.append(Op("s_waitcnt vmcnt(0)", "raw"))
    s(f"v_cmp_ne_u32 vcc, 32, v117\ns_cmp_ge_u32 s{sT1}, 100000\ns_cbranch_scc1 K1_SPUN_\\V\ns_cbranch_vccz K1_SPUN_\\V\ns_branch K1_SPINL_\\V")
    return s

def stats_fetch(dft):
    s = Stream()
    if not dft:
        s(f"v_and_b32 v116, 31, v{vL}\ns_lshl_b32 s{sT1}, s{sW}, 5\nv_add_u32 v116, s{sT1}, v116")
        s(f"s_lshl_b32 s{sT2}, s{sMI}, 11\nv_lshlrev_b32 v118, 3, v116\ns_add_u32 s{sT2}, s{sT2}, {WS_STAT}")
        s(f"buffer_load_dwordx2 v[120:121], v118, s[{sWS}:{sWS+3}], s{sT2} offen sc1", tag="stld")
        s(f"v_and_b32 v119, 15, v{vL}\nv_lshrrev_b32 v122, 4, v{vL}\nv_lshlrev_b32 v122, 9, v122\nv_lshl_add_u32 v122, v119, 2, v122")
        s(f"s_lshl_b32 s{sT1}, s{sW}, 6\ns_lshl_b32 s{sT2}, s{sNI}, 12\ns_add_u32 s{sT2}, s{sT2}, s{sT1}\ns_add_u32 s{sT2}, s{sT2}, {WS_CPART}")
        s(f"buffer_load_dword v123, v122, s[{sWS}:{sWS+3}], s{sT2} offen sc1", tag="stld")
        s(f"buffer_load_dword v124, v122, s[{sWS}:{sWS+3}], s{sT2} offen offset:2048 sc1", tag="stld")
    else:
        s(f"v_bfe_u32 v116, v{vL}, 4, 1\nv_lshlrev_b32 v116, 9, v116\nv_and_b32 v118, 3, v{vL}\nv_lshl_add_u32 v116, v118, 6, v116")
        s(f"v_bfe_u32 v118, v{vL}, 2, 2\nv_add_u32 v116, v116, v118")
        s(f"s_mul_hi_u32 s{sT1}, s{sAI}, 0x333334")
        s(f"s_lshl_b32 s{sT1}, s{sT1}, 3\ns_add_u32 s{sT1}, s{sT1}, {WS_STAT}\nv_lshlrev_b32 v118, 3, v116")
        s(f"buffer_load_dwordx2 v[120:121], v118, s[{sWS}:{sWS+3}], s{sT1} offen sc1", tag="stld")
    return s

def stats_store(dft):
    s = Stream()
    s.wait_vm("stld")
    if not dft:
        s(f"v_mul_f32 v121, v121, v121\nv_lshlrev_b32 v118, 3, v116\nv_add_u32 v118, {LDS_ST}, v118")
        s("ds_write_b64 v118, v[120:121]", tag="stw")
        s("v_add_f32 v123, v123, v124\nv_mov_b32 v124, v123\nv_permlane16_swap_b32 v124, v123\nv_add_f32 v123, v123, v124")
        s("v_mov_b32 v124, v123\nv_permlane32_swap_b32 v124, v123\nv_add_f32 v123, v123, v124")
        s(f"s_lshl_b32 s{sT1}, s{sW}, 6\ns_add_u32 s{sT1}, s{sT1}, {LDS_COL}\nv_lshl_add_u32 v119, v119, 2, s{sT1}")
        s("ds_write_b32 v119, v123", tag="stw")
    else:
        s(f"v_and_b32 v118, 31, v{vL}\ns_lshl_b32 s{sT1}, s{sW}, 7\ns_add_u32 s{sT1}, s{sT1}, {LDS_ST}\nv_lshl_add_u32 v118, v118, 2, s{sT1}")
        s(f"v_mul_f32 v120, v120, v121\nv_mul_f32 v120, 0x44200000, v120")
        s("ds_write_b32 v118, v121", tag="stw"); s("ds_write_b32 v118, v120 offset:1024", tag="stw")
    return s

def zero_flags():
    g = Stream()
    g(f"s_lshl_b32 s{sT2}, s2, 7\ns_add_u32 s{sT1}, s{sOOB0}, s{sT2}\ns_add_u32 s{sT1}, s{sT1}, {WS_FLAG}\nv_mov_b32 v126, 0\ns_mov_b64 exec, 1")
    g(f"buffer_store_dword v126, off, s[{sWS}:{sWS+3}], s{sT1} sc1")
    g("s_mov_b64 exec, -1")
    s = Stream(); s.group(g)
    return s

def epilogue_glu():
    s = Stream()
    s(f"v_and_b32 v2, 15, v{vL}\nv_lshrrev_b32 v3, 4, v{vL}")
    s(f"s_lshl_b32 s{sT1}, s{sWM}, 9\ns_add_u32 s{sT1}, s{sT1}, {LDS_ST}\nv_lshl_add_u32 v4, v2, 3, s{sT1}")
    s(f"s_lshl_b32 s{sT1}, s{sWN}, 7\ns_add_u32 s{sT1}, s{sT1}, {LDS_COL}\nv_lshl_add_u32 v5, v3, 4, s{sT1}")
    for mt in range(4): s(f"ds_read_b64 v[{20+2*mt}:{21+2*mt}], v4 offset:{mt*128}", tag="e1")
    for a in range(2):
        s(f"ds_read_b128 v[{28+4*a}:{31+4*a}], v5 offset:{a*64}", tag="e1")
        s(f"ds_read_b128 v[{36+4*a}:{39+4*a}], v5 offset:{256 + a*64}", tag="e1")
    s(f"s_lshl_b32 s{sT1}, s{sMI}, 4\ns_lshl_b32 s{sT2}, s{sWM}, 2\ns_add_u32 s{sT1}, s{sT1}, s{sT2}\ns_mul_i32 s{sT1}, s{sT1}, 54")
    s(f"s_lshl_b32 s{sT2}, s{sNI}, 1\ns_add_u32 s{sT1}, s{sT1}, s{sT2}\ns_add_u32 s{sT1}, s{sT1}, s{sWN}\ns_lshl_b32 s{sT1}, s{sT1}, 10\ns_add_u32 s{sT1}, s{sT1}, {WS_H}")
    s(f"v_lshlrev_b32 v6, 4, v{vL}")
    s.wait_ds("e1")
    for mt in range(4):
        ms = 20 + 2 * mt
        o = 44 + 4 * (mt & 1) + 8 * 0
        o = 44 + 4 * mt
        for a in range(2):
            G = ACC + 4 * (2 * mt + a); U = G + 32
            for p in range(2):
                g, u = G + 2 * p, U + 2 * p
                cg, cu = 28 + 4 * a + 2 * p, 36 + 4 * a + 2 * p
                s(f"v_pk_fma_f32 v[{g}:{g+1}], v[{ms}:{ms+1}], v[{cg}:{cg+1}], v[{g}:{g+1}] op_sel_hi:[0,1,1] neg_lo:[1,0,0] neg_hi:[1,0,0]")
                s(f"v_pk_fma_f32 v[{u}:{u+1}], v[{ms}:{ms+1}], v[{cu}:{cu+1}], v[{u}:{u+1}] op_sel_hi:[0,1,1] neg_lo:[1,0,0] neg_hi:[1,0,0]")
                s(f"v_pk_mul_f32 v[{g}:{g+1}], v[{g}:{g+1}], v[{ms}:{ms+1}] op_sel:[0,1] op_sel_hi:[1,1]")
                s(f"v_pk_mul_f32 v[{g}:{g+1}], v[{g}:{g+1}], v[{u}:{u+1}]")
                s(f"v_cvt_pk_bf16_f32 v{o + 2*a + p}, v{g}, v{g+1}")
        s(f"buffer_store_dwordx4 v[{o}:{o+3}], v6, s[{sWS}:{sWS+3}], s{sT1} offen sc1")
        if mt < 3: s(f"s_add_u32 s{sT1}, s{sT1}, {54*1024}")
    return s

def epilogue_dft():
    s = Stream()
    s(f"v_and_b32 v2, 15, v{vL}\nv_lshrrev_b32 v3, 4, v{vL}")
    s(f"s_lshl_b32 s{sT1}, s{sWM}, 8\ns_add_u32 s{sT1}, s{sT1}, {LDS_ST}\nv_lshl_add_u32 v4, v3, 4, s{sT1}")
    for mt in range(4): s(f"ds_read_b128 v[{20+4*mt}:{23+4*mt}], v4 offset:{mt*64}", tag="e1")
    for mt in range(4): s(f"ds_read_b128 v[{36+4*mt}:{39+4*mt}], v4 offset:{1024 + mt*64}", tag="e1")
    s(f"v_and_b32 v5, 1, v{vL}\nv_lshlrev_b32 v5, 31, v5\nv_or_b32 v52, 0x3f800000, v5")
    s(f"s_sub_u32 s{sT1}, s{sNI}, 27\ns_or_b32 s{sT1}, s{sT1}, s{sWN}\ns_cmp_eq_u32 s{sT1}, 0\ns_cselect_b32 s{sT1}, 1.0, 0")
    s(f"v_cmp_eq_u32 vcc, 0, v2\nv_mov_b32 v5, s{sT1}\nv_cndmask_b32 v54, 0, v5, vcc")
    s(f"s_mul_i32 s{sT1}, s{sW}, 9216\nv_mul_u32_u24 v6, 144, v2\nv_lshl_add_u32 v6, v3, 4, v6\nv_add_u32 v6, s{sT1}, v6")
    s(f"v_lshrrev_b32 v7, 3, v{vL}\nv_and_b32 v8, 7, v{vL}\nv_mul_u32_u24 v9, 144, v7\nv_lshl_add_u32 v9, v8, 4, v9\nv_add_u32 v9, s{sT1}, v9")
    s(f"v_lshlrev_b32 v7, 13, v7\nv_lshl_add_u32 v7, v8, 4, v7")
    s.wait_ds("e1")
    for nt in range(4):
        for P in range(2):
            o = 56 + 4 * ((2 * nt + P) & 3)
            for hh in range(2):
                mt = 2 * P + hh
                lo = ACC + 4 * (4 * mt + nt); hi = lo + 64
                for p in range(2):
                    a, b = lo + 2 * p, hi + 2 * p
                    rs = 20 + 4 * mt + 2 * p; cr = 36 + 4 * mt + 2 * p
                    s(f"v_pk_fma_f32 v[{a}:{a+1}], v[{b}:{b+1}], v[52:53], v[{a}:{a+1}] op_sel_hi:[1,0,1]")
                    s(f"v_pk_mul_f32 v[{a}:{a+1}], v[{a}:{a+1}], v[{rs}:{rs+1}]")
                    if nt == 0:
                        s(f"v_pk_fma_f32 v[{a}:{a+1}], v[{cr}:{cr+1}], v[54:55], v[{a}:{a+1}] op_sel_hi:[1,0,1] neg_lo:[1,0,0] neg_hi:[1,0,0]")
                    s(f"v_cvt_pk_bf16_f32 v{o + 2*hh + p}, v{a}, v{a+1}")
            s(f"ds_write_b128 v6, v[{o}:{o+3}] offset:{nt*16*144 + P*64}", tag="bw")
    s(f"s_sub_u32 s{sT1}, s{sNI}, 27\ns_lshl_b32 s{sT1}, s{sT1}, 1\ns_add_u32 s{sT1}, s{sT1}, s{sWN}\ns_lshl_b32 s{sT1}, s{sT1}, 18")
    s(f"s_and_b32 s{sT2}, s{sMI}, 1\ns_lshl_b32 s{sT2}, s{sT2}, 11\ns_add_u32 s{sT1}, s{sT1}, s{sT2}")
    s(f"s_lshr_b32 s{sT2}, s{sMI}, 2\ns_lshl_b32 s{sT2}, s{sT2}, 10\ns_add_u32 s{sT1}, s{sT1}, s{sT2}")
    s(f"s_bfe_u32 s{sT2}, s{sMI}, 0x10001\ns_lshl_b32 s{sT2}, s{sT2}, 9\ns_add_u32 s{sT1}, s{sT1}, s{sT2}")
    s(f"s_lshl_b32 s{sT2}, s{sWM}, 7\ns_add_u32 s{sT1}, s{sT1}, s{sT2}\ns_add_u32 s{sT1}, s{sT1}, {WS_AT}")
    s.wait_ds("bw")
    for i in range(8):
        r = 60 + 4 * i if i < 8 else 0
        s(f"ds_read_b128 v[{72+4*i}:{75+4*i}], v9 offset:{i*8*144}", tag=f"br{i}")
    for i in range(8):
        nt = i >> 1; part, gk = nt >> 1, nt & 1
        off = (16 * gk + 8 * (i & 1)) * 8192 + part * 4096
        s.wait_ds(f"br{i}")
        s(f"s_add_u32 s{sT2}, s{sT1}, {off}")
        s(f"buffer_store_dwordx4 v[{72+4*i}:{75+4*i}], v7, s[{sWS}:{sWS+3}], s{sT2} offen sc1")
    return s

vROT = 84
vC0, vS0, vC64, vS64 = 98, 99, 100, 101
vFW = 102
vGT = 104
vTMP = 112

def fgen_setup():
    s = Stream()
    s(f"s_sub_u32 s{sT1}, s{sNI}, 27\ns_lshl_b32 s{sT1}, s{sT1}, 6\ns_and_b32 s{sT2}, s{sW}, 3\ns_lshl_b32 s{sT2}, s{sT2}, 4\ns_add_u32 s{sT1}, s{sT1}, s{sT2}")
    s(f"v_and_b32 v2, 15, v{vL}\nv_add_u32 v2, s{sT1}, v2\nv_cvt_f32_u32 v3, v2")
    s(f"v_cmp_eq_u32 s[{sMASK}:{sMASK+1}], 0, v2")
    s(f"s_lshr_b32 s{sT2}, s{sW}, 2\ns_lshl_b32 s{sT2}, s{sT2}, 5\nv_lshrrev_b32 v4, 4, v{vL}\nv_lshl_add_u32 v4, v4, 3, s{sT2}\nv_cvt_f32_u32 v4, v4")
    def angle(dst_c, dst_s, src, neg):
        s(f"v_mul_f32 v5, {INV640}, {src}\nv_floor_f32 v5, v5\nv_fma_f32 v5, v5, s{sT3}, {src}\nv_mul_f32 v5, {INV640}, v5")
        s(f"v_cos_f32 v{dst_c}, v5\nv_sin_f32 v{dst_s}, v5")
        if neg: s(f"v_sub_f32 v{dst_s}, 0, v{dst_s}")
    s(f"s_mov_b32 s{sT3}, {f2h(-640.0)}")
    for j in range(1, 8):
        s(f"v_mul_f32 v6, {float(j) if j in (1,2,4) else f2h(float(j))}, v3")
        angle(vROT + 2*(j-1), vROT + 2*(j-1) + 1, "v6", False)
    s("v_mul_f32 v6, v3, v4"); angle(vC0, vS0, "v6", True)
    s(f"v_mul_f32 v6, {f2h(64.0)}, v3"); angle(vC64, vS64, "v6", False)
    s(f"s_lshr_b32 s{sT1}, s{sW}, 2\ns_lshl_b32 s{sT1}, s{sT1}, 13\ns_and_b32 s{sT2}, s{sW}, 3\ns_lshl_b32 s{sT2}, s{sT2}, 10")
    s(f"s_add_u32 s{sT1}, s{sT1}, s{sT2}\ns_add_u32 s{sT1}, s{sT1}, {LDS_B}\nv_lshlrev_b32 v5, 4, v{vL}\nv_add_u32 v{vFW}, s{sT1}, v5")
    s(f"v_mov_b32 v103, 0xbf803f80")
    return s

def fgen(p):
    s = Stream()
    t = vTMP
    for jj in range(4):
        vals = []
        for j in (2*jj, 2*jj + 1):
            c, sn = t + 2*(j & 1), t + 4 + 2*(j & 1)
            if j == 0:
                vals.append((vC0, vS0)); continue
            cj, sj = vROT + 2*(j-1), vROT + 2*(j-1) + 1
            cc, ss = t + (j & 1), t + 2 + (j & 1)
            s(f"v_mul_f32 v{cc}, v{vC0}, v{cj}\nv_mul_f32 v{ss}, v{vS0}, v{cj}")
            s(f"v_fmac_f32 v{cc}, v{vS0}, v{sj}\nv_fma_f32 v{ss}, -v{vC0}, v{sj}, v{ss}")
            vals.append((cc, ss))
        s(f"v_cvt_pk_bf16_f32 v{vGT+jj}, v{vals[0][0]}, v{vals[1][0]}")
        s(f"v_cvt_pk_bf16_f32 v{vGT+4+jj}, v{vals[0][1]}, v{vals[1][1]}")
        s(f"v_cndmask_b32 v{vGT+4+jj}, v{vGT+4+jj}, v103, s[{sMASK}:{sMASK+1}]")
    buf = p & 1
    s(f"ds_write_b128 v{vFW}, v[{vGT}:{vGT+3}] offset:{buf*16384}", tag=f"fw{p}")
    s(f"ds_write_b128 v{vFW}, v[{vGT+4}:{vGT+7}] offset:{buf*16384 + 4096}", tag=f"fw{p}")
    if p < 4:
        s(f"v_mul_f32 v{t}, v{vC0}, v{vC64}\nv_mul_f32 v{t+1}, v{vS0}, v{vC64}")
        s(f"v_fmac_f32 v{t}, v{vS0}, v{vS64}\nv_fma_f32 v{vS0}, -v{vC0}, v{vS64}, v{t+1}\nv_mov_b32 v{vC0}, v{t}")
    return s

def path(dft, side=None, opts=None):
    V = "D" if dft else "G"
    mode = OPT.get("stats", 1)
    s = Stream()
    s.extend(dma_addr_setup(dft))
    for b in range(2):
        for g in dma_stage(b, dft): s.extend(g)
        if b == 0: s("s_barrier")
    if mode == 2: s.extend(stats_loads(dft))
    stamp(s, 2)
    s.extend(lds_addr_setup(dft))
    s.extend(leader_setup())
    if dft:
        s.extend(fgen_setup()); s.extend(fgen(0))
    if not OPT.get("cyc"): stamp(s, 4)
    s.wait_ds("all"); s.wait_vm("stage0"); s("s_barrier")
    stamp(s, 5)
    if STAMPS and OPT.get("cyc"): s("s_memtime s[90:91]")
    s.extend(frag_reads(0, dft))
    ex = {(b, h): Stream() for b in range(10) for h in "AB"}
    o = OPT.get("sdelay", 1)
    if mode == 1: ex[(o - 1, "B")].extend(stats_loads(dft))
    if mode:
        c = o + OPT.get("sgap", 1) if mode == 1 else 0
        ex[(c, "B")].extend(row_stats())
        if not dft:
            ex[(c, "B")].extend(col_stats())
            ex[(c + 1, "B")].extend(colsum_publish())
        pubwait = c + 3
        ex[(c + 3, "B")].extend(arrive())
        pb = OPT.get("pollb", 7)
        ex[(pb, "A")].extend(poll_issue())
        ex[(pb + 1, "A")].extend(poll_check())
        ex[(pb + 1, "B")].extend(stats_fetch(dft))
    ex[(1, "B")].extend(zero_flags())
    if dft:
        for p in range(1, 5):
            f = fgen(p); h = len(f) // 2
            while f[h].kind == "ds": h -= 1
            ex[(2*p - 2, "B")].extend(f[:h]); ex[(2*p - 1, "A")].extend(f[h:])
    elif side is not None:
        for key, st in side.items():
            if key != "end": ex[key].extend(st)
    pend_dma = dma_stage(2, dft)
    for b in range(10):
        rd = frag_reads(2*b + 1, dft)
        dm = Stream()
        for g in pend_dma: dm.extend(g)
        pend_dma = []
        s.wait_ds(f"rd{2*b}")
        s.extend(merge(mfmas(2*b, dft), [rd, dm, ex[(b, "A")]]))
        s.wait_ds("all")
        if b + 1 <= 9: s.wait_vm(f"stage{b+1}")
        if mode and b == pubwait: s.wait_vm("pub")
        s("s_barrier")
        if STAMPS and b == 4 and not OPT.get("cyc"): stamp(s, 3)
        groups = dma_stage(b + 3, dft) if b + 3 <= 9 else []
        half = (len(groups) + 1) // 2
        dm = Stream()
        for g in groups[:half]: dm.extend(g)
        pend_dma = groups[half:]
        rd = frag_reads(2*b + 2, dft) if b < 9 else Stream()
        s.extend(merge(mfmas(2*b + 1, dft), [rd, dm, ex[(b, "B")]]))
    stamp(s, 6)
    if STAMPS and OPT.get("cyc"): s("s_memtime s[92:93]")
    if mode:
        s.extend(stats_store(dft)); s.wait_ds("all"); s("s_barrier")
    s.extend(epilogue_dft() if dft else epilogue_glu())
    if not dft and side is not None and "end" in side: s.extend(side["end"])
    stamp_out(s, 8)
    s("s_endpgm")
    if mode: s.extend(spin_block())
    s = flatten(s)
    for op in s: op.text = op.text.replace("\\V", V)
    return s

def kernel(name="k1_kernel", side=None):
    h = head()
    h(f"s_cmp_ge_u32 s{sNI}, 27\ns_cbranch_scc1 K1_DFT")
    g = Stream(); g.extend(h); g.extend(path(False, side))
    lines = finish(g)
    d = Stream(); d("K1_DFT:"); d.extend(path(True))
    lines += finish(d)
    lines += ["K1_END:", "s_endpgm"]
    return f".globl {name}\n.p2align 8\n.type {name},@function\n{name}:\n" + "\n".join(lines) + "\n"
```

```python
from emit import *
from common import *

sX, sOUT, sWS, sWK, sDBG, sWSI = 8, 12, 16, 20, 24, 28
sW, sMB, sNB = 40, 41, 42
sH, sB = 44, 48
sT0, sT1, sT2, sT3 = 54, 55, 56, 57
vL = 1
RED = 21504
L_T1 = 0
L_T3 = L_T1 + 16384
L_F64 = L_T3 + 16384
L_F32 = L_F64 + 24576
L_FLAG = L_F32 + 6144
L_GEMM = L_FLAG + 128
LDS_BYTES = L_GEMM + 4 * RED
L_EX = L_GEMM
L_BNC = L_EX + 32768

STAMPS = False
OPT = {}
WS_STAMP = 0x15A0000
def stamp(s, i):
    if STAMPS: s(f"s_memrealtime s[{84+2*i}:{85+2*i}]")
def stamp_out(s, n):
    if not STAMPS: return
    s("s_waitcnt vmcnt(0)"); stamp(s, n - 1); s("s_waitcnt lgkmcnt(0)")
    s(f"s_lshl_b32 s{sT1}, s2, 3\ns_add_u32 s{sT1}, s{sT1}, s{sW}\ns_lshl_b32 s{sT1}, s{sT1}, 5\ns_add_u32 s{sT1}, s{sT1}, {WS_STAMP}")
    for i in range(n): s(f"v_mov_b32 v{20+i}, s{84+2*i}")
    s("s_mov_b64 exec, 1")
    s(f"buffer_store_dwordx4 v[20:23], off, s[{sWS}:{sWS+3}], s{sT1}")
    s(f"buffer_store_dwordx4 v[24:27], off, s[{sWS}:{sWS+3}], s{sT1} offset:16")

def head():
    s = Stream()
    if STAMPS: s("s_memrealtime s[84:85]")
    s("s_cmp_ge_u32 s2, 256\ns_cbranch_scc1 K2_END")
    s("s_load_dwordx2 s[60:61], s[0:1], 0\ns_load_dwordx2 s[64:65], s[0:1], 56\ns_load_dwordx2 s[68:69], s[0:1], 72")
    s(f"v_and_b32 v{vL}, 63, v0\nv_lshrrev_b32 v2, 6, v0")
    s("s_and_b32 s3, s2, 7\ns_lshr_b32 s4, s2, 3")
    s(f"v_readfirstlane_b32 s{sW}, v2")
    s(f"s_and_b32 s5, s3, 3\ns_lshl_b32 s5, s5, 3\ns_and_b32 s6, s4, 7\ns_add_u32 s{sMB}, s5, s6")
    s(f"s_lshr_b32 s5, s3, 2\ns_lshl_b32 s5, s5, 2\ns_lshr_b32 s6, s4, 3\ns_add_u32 s{sNB}, s5, s6")
    s(f"v_lshlrev_b32 v2, 2, v{vL}\nv_and_b32 v2, 31, v2\nv_add_u32 v2, {L_FLAG}, v2\nv_mov_b32 v3, 0\nds_write_b32 v2, v3")
    s("s_waitcnt lgkmcnt(0)")
    srd(s, sX, 60, S * D * 2)
    srd(s, sOUT, 64, S * D * 2)
    srd(s, sWS, 68, WS_SIZE)
    srd(s, sWK, 68, WS_SIZE)
    srd(s, sWSI, 68, WS_SIZE)
    return s

TT = 176
def trig(s, dst_c, dst_s, src, scale):
    s(f"v_cvt_f32_u32 v9, {src}\nv_mul_f32 v9, {scale}, v9\nv_cos_f32 v{dst_c}, v9\nv_sin_f32 v{dst_s}, v9")

def tables(V):
    s = Stream()
    R2048, R64, R32 = f2h(1/2048), f2h(1/64), f2h(1/32)
    a, b, c, d = TT, TT + 8, TT + 16, TT + 32
    s(f"v_and_b32 v12, 31, v{vL}\nv_lshrrev_b32 v13, 5, v{vL}\nv_lshlrev_b32 v14, 4, v{vL}")
    s(f"s_lshl_b32 s{sT2}, s{sW}, 3\ns_lshl_b32 s{sT3}, s{sW}, 11\nv_add_u32 v15, s{sT3}, v14")
    s(f"v_lshl_add_u32 v16, v13, 2, s{sT2}")
    for r in range(4):
        s(f"v_add_u32 v17, {r}, v16\nv_mul_u32_u24 v17, v17, v12"); trig(s, a + r, a + 4 + r, "v17", R2048)
    s(f"ds_write_b128 v15, v[{a}:{a+3}] offset:{L_T1}\nds_write_b128 v15, v[{a+4}:{a+7}] offset:{L_T1 + 1024}")
    s(f"s_lshr_b32 s{sT2}, s{sW}, 2\ns_lshl_b32 s{sT2}, s{sT2}, 5\nv_add_u32 v18, s{sT2}, v12")
    s(f"s_and_b32 s{sT2}, s{sW}, 3\ns_lshl_b32 s{sT2}, s{sT2}, 3\nv_lshl_add_u32 v16, v13, 2, s{sT2}")
    for r in range(4):
        s(f"v_add_u32 v17, {r}, v16\nv_mul_u32_u24 v17, v17, v18"); trig(s, b + r, b + 4 + r, "v17", R2048)
    sc = f2h(1.0 / (640 * 2048))
    for r in range(8): s(f"v_mul_f32 v{b+r}, {sc}, v{b+r}")
    s(f"ds_write_b128 v15, v[{b}:{b+3}] offset:{L_T3}\nds_write_b128 v15, v[{b+4}:{b+7}] offset:{L_T3 + 1024}")
    def dft_frag(g, mask, scale):
        for j in range(8):
            g(f"v_add_u32 v17, {8*(j >> 2) + (j & 3)}, v16\nv_mul_u32_u24 v17, v17, v18\nv_and_b32 v17, {mask}, v17"); trig(g, c + j, c + 8 + j, "v17", scale)
        for jj in range(4):
            g(f"v_cvt_pk_bf16_f32 v{d+jj}, v{c+2*jj}, v{c+1+2*jj}\nv_cvt_pk_bf16_f32 v{d+8+jj}, v{c+8+2*jj}, v{c+9+2*jj}")
            g(f"v_xor_b32 v{d+4+jj}, 0x80008000, v{d+8+jj}")
    s(f"s_and_b32 s{sT2}, s{sW}, 3\ns_lshl_b32 s{sT2}, s{sT2}, 4\nv_lshl_add_u32 v16, v13, 2, s{sT2}")
    dft_frag(s, 63, R64)
    s(f"s_lshl_b32 s{sT3}, s{sW}, 10\ns_add_u32 s{sT3}, s{sT3}, {L_F64}\nv_add_u32 v15, s{sT3}, v14")
    s(f"ds_write_b128 v15, v[{d}:{d+3}]\nds_write_b128 v15, v[{d+4}:{d+7}] offset:8192\nds_write_b128 v15, v[{d+8}:{d+11}] offset:16384")
    if V == "G": return s
    s(f"s_cmp_lt_u32 s{sW}, 6\ns_cbranch_scc1 K2_NOF32{V}")
    s(f"s_sub_u32 s{sT1}, s{sW}, 6\ns_lshl_b32 s{sT2}, s{sT1}, 4\nv_lshl_add_u32 v16, v13, 2, s{sT2}\nv_mov_b32 v18, v12")
    dft_frag(s, 31, R32)
    s(f"s_lshl_b32 s{sT3}, s{sT1}, 10\ns_add_u32 s{sT3}, s{sT3}, {L_F32}\nv_add_u32 v15, s{sT3}, v14")
    s(f"ds_write_b128 v15, v[{d}:{d+3}]\nds_write_b128 v15, v[{d+4}:{d+7}] offset:2048\nds_write_b128 v15, v[{d+8}:{d+11}] offset:4096")
    s(f"K2_NOF32{V}:")
    return s

SETS = [20, 56, 92, 128]
ACC = 176
XR, EA, EG = 128, 164, 169
NH = 14

def gemm_path():
    s = Stream()
    s(f"v_lshlrev_b32 v2, 4, v{vL}")
    s(f"s_mul_i32 s{sT0}, s{sW}, 14\ns_cmp_eq_u32 s{sW}, 3\ns_cselect_b32 s{sT1}, 1, 0\ns_sub_u32 s{sT0}, s{sT0}, s{sT1}")
    s(f"s_lshl_b32 s{sT1}, s{sMB}, 2\ns_mul_i32 s{sT1}, s{sT1}, 54\ns_add_u32 s{sT1}, s{sT1}, s{sT0}\ns_lshl_b32 s{sT1}, s{sT1}, 10\ns_add_u32 s{sH}, s{sT1}, {WS_H}")
    for st in range(1, 4): s(f"s_add_u32 s{sH+st}, s{sH}, {st*54*1024}")
    s(f"s_mul_i32 s{sT1}, s{sNB}, {5*74}\ns_add_u32 s{sT1}, s{sT1}, s{sT0}\ns_lshl_b32 s{sT1}, s{sT1}, 10\ns_add_u32 s{sB}, s{sT1}, {WS_WB}")
    for dt in range(1, 5): s(f"s_add_u32 s{sB+dt}, s{sB}, {dt*74*1024}")
    def loads(u):
        st0 = SETS[u % 4]
        g = Stream()
        if u == NH - 1:
            g(f"s_cmp_ge_u32 s{sW}, 2\ns_cselect_b32 s{sWK+2}, 0, s{sWK+2}")
        if u < NH:
            order = [("h", 0), ("b", 0), ("h", 1), ("b", 1), ("h", 2), ("b", 2), ("h", 3), ("b", 3), ("b", 4)]
            for kind, i in order:
                r = st0 + 4 * i if kind == "h" else st0 + 16 + 4 * i
                so = sH + i if kind == "h" else sB + i
                g(f"buffer_load_dwordx4 v[{r}:{r+3}], v2, s[{sWK}:{sWK+3}], s{so} offen", tag=f"ld{u}")
            g(f"s_add_u32 s{sWK}, s{sWK}, 1024\ns_addc_u32 s{sWK+1}, s{sWK+1}, 0")
        else:
            z = u - NH
            if z == 0:
                g(f"s_mul_i32 s{sT1}, s{sNB}, {5*74}\ns_mul_i32 s{sT0}, s{sW}, 5\ns_add_u32 s{sT1}, s{sT1}, s{sT0}\ns_add_u32 s{sT1}, s{sT1}, 54")
                g(f"s_lshl_b32 s{sT1}, s{sT1}, 10\ns_add_u32 s{sB}, s{sT1}, {WS_WB}")
                for dt in range(1, 5): g(f"s_add_u32 s{sB+dt}, s{sB}, {dt*74*1024}")
            if z == 4:
                for dt in range(5): g(f"s_add_u32 s{sB+dt}, s{sB+dt}, 4096")
            for dt in range(5):
                r = st0 + 16 + 4 * dt
                g(f"buffer_load_dwordx4 v[{r}:{r+3}], v2, s[{sWS}:{sWS+3}], s{sB+dt} offen offset:{(z & 3)*1024}", tag=f"ld{u}")
        return g
    def mfmas(u):
        st0 = SETS[u % 4]
        g = Stream()
        for st in range(4):
            for dt in range(5):
                acc = ACC + 4 * (5 * st + dt)
                c = "0" if u == 0 else f"v[{acc}:{acc+3}]"
                g(f"v_mfma_f32_16x16x32_bf16 v[{acc}:{acc+3}], v[{st0+16+4*dt}:{st0+19+4*dt}], v[{st0+4*st}:{st0+4*st+3}], {c}")
        return g
    first = Stream()
    for u in range(3): first.extend(loads(u))
    s.extend(merge(first, [tables("G")], front=False, on="vm"))
    stamp(s, 1)
    s("s_waitcnt lgkmcnt(0)\ns_barrier")
    def epi_addr():
        g = Stream()
        g(f"s_lshl_b32 s{sT2}, s{sW}, 4")
        for i in range(5):
            g(f"v_add_u32 v6, {64*i}, v{vL}\nv_mul_u32_u24 v7, 3277, v6\nv_lshrrev_b32 v7, 16, v7")
            g(f"v_mul_u32_u24 v8, 20, v7\nv_sub_u32 v8, v6, v8\nv_add_u32 v7, s{sT2}, v7")
            g(f"v_mul_u32_u24 v9, 336, v7\nv_lshl_add_u32 v9, v8, 4, v9\nv_add_u32 v{EA+i}, {L_GEMM}, v9")
            g(f"v_mul_u32_u24 v9, 1280, v7\nv_lshl_add_u32 v{EG+i}, v8, 3, v9")
        g(f"s_lshl_b32 s{sT2}, s{sMB}, 6\ns_mul_i32 s{sT2}, s{sT2}, 1280\ns_mul_i32 s{sT3}, s{sNB}, 160\ns_add_u32 s58, s{sT2}, s{sT3}")
        return g
    def z_addr():
        g = Stream()
        g(f"v_lshrrev_b32 v6, 3, v{vL}\nv_lshlrev_b32 v6, 12, v6\nv_bfe_u32 v7, v{vL}, 4, 1\nv_lshlrev_b32 v7, 1, v7\nv_and_b32 v8, 7, v{vL}\nv_xor_b32 v7, v7, v8")
        g(f"v_lshl_add_u32 v16, v7, 4, v6\nv_xor_b32 v17, 64, v16")
        g(f"s_mul_i32 s53, s{sW}, {160*4096}\ns_lshl_b32 s{sT3}, s{sMB}, 7\ns_add_u32 s53, s53, s{sT3}\ns_add_u32 s53, s53, {WS_ZT}")
        g(f"s_mul_i32 s59, s{sW}, {RED}\ns_add_u32 s59, s59, {L_GEMM}")
        g(f"v_and_b32 v8, 15, v{vL}\nv_lshrrev_b32 v9, 4, v{vL}\nv_lshrrev_b32 v10, 2, v8\nv_lshl_add_u32 v10, v9, 3, v10")
        g(f"v_bfe_u32 v11, v{vL}, 3, 1\nv_and_b32 v12, 1, v9\nv_lshl_or_b32 v11, v12, 1, v11")
        g(f"v_lshlrev_b32 v11, 5, v11\nv_lshl_add_u32 v10, v10, 7, v11\nv_and_b32 v12, 3, v8\nv_lshl_add_u32 v10, v12, 3, v10\nv_add_u32 v12, s59, v10")
        for st in range(1, 4): g(f"v_xor_b32 v{12+st}, {32*st}, v12")
        return g
    def poll_issue():
        g = Stream()
        g(f"v_and_b32 v3, 7, v{vL}\nv_mov_b32 v4, 40\nv_mov_b32 v5, 41")
        h = Stream(); h("v_cmp_eq_u32 vcc, 0, v3\nv_cndmask_b32 v4, v4, v5, vcc"); g.group(h)
        g(f"v_lshlrev_b32 v3, 7, v3\ns_and_b32 s{sT3}, s2, 31\ns_lshl_b32 s{sT3}, s{sT3}, 10\ns_add_u32 s43, s{sT3}, {WS_FLAG}")
        g(f"s_cmp_eq_u32 s{sW}, 0\ns_cselect_b32 s{sT3}, s43, 0x40000000")
        g(f"buffer_load_dword v5, v3, s[{sWS}:{sWS+3}], s{sT3} offen sc1", tag="poll")
        return g
    extra = {5: epi_addr(), 7: z_addr(), 12: poll_issue()}
    for u in range(NH):
        s.wait_vm(f"ld{u}")
        s.extend(merge(mfmas(u), [loads(u + 3), extra.get(u, Stream())], front=False))
        if u == 0: stamp(s, 2)
    stamp(s, 3)
    s.extend(loads(NH + 3))
    g = Stream()
    g(f"s_cmp_lg_u32 s{sW}, 0\ns_cbranch_scc1 K2_SPUN")
    g.wait_vm("poll")
    g(f"v_cmp_ne_u32 vcc, v4, v5\ns_cbranch_vccz K2_SPUN\ns_mov_b32 s{sT1}, 0\nK2_SPINL:\ns_sleep 4")
    g.append(Op(f"buffer_load_dword v5, v3, s[{sWS}:{sWS+3}], s43 offen sc1", "raw"))
    g(f"s_add_u32 s{sT1}, s{sT1}, 1"); g.append(Op("s_waitcnt vmcnt(0)", "raw"))
    g(f"v_cmp_ne_u32 vcc, v4, v5\ns_cmp_ge_u32 s{sT1}, 100000\ns_cbranch_scc1 K2_SPUN\ns_cbranch_vccnz K2_SPINL\nK2_SPUN:")
    s.group(g)
    s("s_barrier")
    stamp(s, 4)
    for i in range(20):
        s(f"s_add_u32 m0, s59, {i*1024}")
        s(f"buffer_load_dwordx4 v{16 + (i & 1)}, s[{sWS}:{sWS+3}], s53 offen sc1 lds", tag=f"z{i//4}")
        if i < 19: s(f"s_add_u32 s53, s53, {8*4096}")
    def zreads(z):
        g = Stream(); base = SETS[(NH + z) % 4]
        for st in range(4):
            for jh in range(2):
                g(f"ds_read_b64_tr_b16 v[{base+4*st+2*jh}:{base+4*st+2*jh+1}], v{12+st} offset:{z*4096 + jh*512}", tag=f"zr{z}")
        return g
    s.wait_vm("z0"); s.extend(zreads(0))
    for z in range(5):
        nxt = Stream()
        if z < 4:
            nxt.wait_vm(f"z{z+1}"); nxt.extend(zreads(z + 1))
        more = Stream()
        if z == 1: more.extend(loads(NH + 4))
        if z == 2:
            for i in range(5):
                more(f"buffer_load_dwordx2 v[{XR+2*i}:{XR+1+2*i}], v{EG+i}, s[{sX}:{sX+3}], s58 offen", tag="xld")
        s.wait_ds(f"zr{z}"); s.wait_vm(f"ld{NH+z}")
        s.extend(merge(mfmas(NH + z), [nxt, more]))
    stamp(s, 5)
    s(f"v_and_b32 v8, 15, v{vL}\nv_lshrrev_b32 v9, 4, v{vL}\nv_mul_u32_u24 v10, 336, v8\nv_lshl_add_u32 v10, v9, 4, v10\nv_add_u32 v10, s59, v10")
    for st in range(4):
        for dt in range(5):
            acc = ACC + 4 * (5 * st + dt)
            s(f"ds_write_b128 v10, v[{acc}:{acc+3}] offset:{st*16*336 + dt*64}", tag="rw")
    s.wait_ds("all"); s("s_barrier")
    RB = 20
    for i in range(5):
        for p in range(4):
            r = RB + 16 * i + 4 * p
            s(f"ds_read_b128 v[{r}:{r+3}], v{EA+i} offset:{p*RED}", tag=f"rr{i}")
    s.wait_vm("xld")
    for i in range(5):
        r = RB + 16 * i
        s.wait_ds(f"rr{i}")
        for c in range(4):
            s(f"v_add_f32 v{r+c}, v{r+c}, v{r+4+c}\nv_add_f32 v{r+8+c}, v{r+8+c}, v{r+12+c}\nv_add_f32 v{r+c}, v{r+c}, v{r+8+c}")
        x0, x1 = XR + 2 * i, XR + 2 * i + 1
        s(f"v_lshlrev_b32 v3, 16, v{x0}\nv_and_b32 v4, 0xffff0000, v{x0}\nv_lshlrev_b32 v5, 16, v{x1}\nv_and_b32 v6, 0xffff0000, v{x1}")
        s(f"v_add_f32 v{r}, v{r}, v3\nv_add_f32 v{r+1}, v{r+1}, v4\nv_add_f32 v{r+2}, v{r+2}, v5\nv_add_f32 v{r+3}, v{r+3}, v6")
        s(f"v_cvt_pk_bf16_f32 v{r+4}, v{r}, v{r+1}\nv_cvt_pk_bf16_f32 v{r+5}, v{r+2}, v{r+3}")
        s(f"buffer_store_dwordx2 v[{r+4}:{r+5}], v{EG+i}, s[{sOUT}:{sOUT+3}], s58 offen")
    stamp_out(s, 8)
    s("s_endpgm")
    return s

XO, XP = 20, 36
WR = 52
FR, FI, FN = 84, 92, 100
TW = 108
AR, AI = 128, 144
FS = 192
def xo(part, t): return XO + 4 * (2 * part + t)
def xp(part, t): return XP + 4 * (2 * part + t)

def pack(s, g):
    t = g >> 1; o = 2 * (g & 1)
    s(f"v_cvt_pk_bf16_f32 v{xo(0,t)+o}, v224, v225\nv_cvt_pk_bf16_f32 v{xo(0,t)+o+1}, v226, v227")
    s(f"v_cvt_pk_bf16_f32 v{xo(1,t)+o}, v228, v229\nv_cvt_pk_bf16_f32 v{xo(1,t)+o+1}, v230, v231")

def cmul_pass(s, name, sign):
    table = {"t1": L_T1, "t3": L_T3}[name]
    def rd(g):
        b = TW + 8 * (g & 1)
        s(f"ds_read_b128 v[{b}:{b+3}], v10 offset:{table + g*2048}", tag=f"{name}{g}")
        s(f"ds_read_b128 v[{b+4}:{b+7}], v10 offset:{table + g*2048 + 1024}", tag=f"{name}{g}")
    rd(0)
    for g in range(4):
        if g < 3: rd(g + 1)
        s.wait_ds(f"{name}{g}")
        b = TW + 8 * (g & 1)
        for r in range(4):
            re, im, c, sn, t1, t2 = AR + 4*g + r, AI + 4*g + r, b + r, b + 4 + r, 224 + r, 228 + r
            s(f"v_mul_f32 v{t1}, v{re}, v{c}\nv_mul_f32 v{t2}, v{im}, v{c}")
            if sign < 0: s(f"v_fmac_f32 v{t1}, v{im}, v{sn}\nv_fma_f32 v{t2}, -v{re}, v{sn}, v{t2}")
            else: s(f"v_fma_f32 v{t1}, -v{im}, v{sn}, v{t1}\nv_fmac_f32 v{t2}, v{re}, v{sn}")
        pack(s, g)

def exchange(s, n):
    for i in range(4):
        s(f"ds_write_b128 v11, v[{XO+4*i}:{XO+4*i+3}] offset:{(n-1)*4096 + i*1024}")
    s(f"v_mov_b32 v5, {n}\ns_waitcnt lgkmcnt(0)\nds_write_b32 v15, v5")
    s(f"s_mov_b32 s{sT1}, 0\nK2_EX{n}:\nds_read_b32 v6, v16\ns_add_u32 s{sT1}, s{sT1}, 1\ns_waitcnt lgkmcnt(0)")
    s(f"v_readfirstlane_b32 s{sT2}, v6\ns_cmp_ge_u32 s{sT1}, 1000000\ns_cbranch_scc1 K2_EXD{n}\ns_cmp_lt_u32 s{sT2}, {n}\ns_cbranch_scc1 K2_EX{n}\nK2_EXD{n}:")
    for i in range(4):
        s(f"ds_read_b128 v[{XP+4*i}:{XP+4*i+3}], v12 offset:{(n-1)*4096 + i*1024}", tag=f"ex{n}")

def M32(s, d, a, b, first):
    c = "0" if first else f"v[{d}:{d+15}]"
    s(f"v_mfma_f32_32x32x16_bf16 v[{d}:{d+15}], v[{a}:{a+3}], v[{b}:{b+3}], {c}")

def col_path():
    s = Stream()
    if OPT.get("prio", 1): s("s_setprio 3")
    s(f"s_sub_u32 s{sT0}, s{sW}, 4\ns_lshr_b32 s{sT0}, s{sT0}, 1\ns_lshl_b32 s{sT0}, s{sT0}, 8\ns_add_u32 s44, s2, s{sT0}\ns_and_b32 s52, s{sW}, 1")
    s("s_cmp_eq_u32 s44, 320\ns_cselect_b32 s45, 1, 0\ns_cselect_b32 s46, 0, s44")
    s(f"s_cmp_eq_u32 s46, 0\ns_cselect_b32 s{sWSI+2}, 0, s{sWSI+2}")
    s(f"s_cmp_gt_u32 s44, 320\ns_cselect_b32 s{sWSI+2}, 0, s{sWSI+2}\ns_cselect_b32 s53, 0, s{sWS+2}")
    s(f"s_mov_b32 s{sWK+2}, s53")
    s(f"s_lshl_b32 s47, s46, 13\ns_add_u32 s47, s47, {WS_AT}\ns_lshl_b32 s{sT0}, s52, 11\ns_add_u32 s47, s47, s{sT0}")
    s(f"s_lshl_b32 s{sT0}, s45, 12\ns_add_u32 s48, s47, s{sT0}\ns_add_u32 s47, s47, 4096")
    s(f"s_lshl_b32 s49, s44, 13\ns_add_u32 s49, s49, {WS_WT}\ns_lshl_b32 s{sT0}, s52, 12\ns_add_u32 s49, s49, s{sT0}")
    s(f"s_lshl_b32 s50, s46, 1\ns_add_u32 s50, s50, s45\ns_lshl_b32 s50, s50, 12\ns_add_u32 s50, s50, {WS_ZT}")
    s(f"s_lshl_b32 s{sT0}, s52, 6\ns_add_u32 s50, s50, s{sT0}\ns_add_u32 s51, s50, 4096")
    s(f"v_lshlrev_b32 v4, 4, v{vL}")
    for t in range(2):
        s(f"buffer_load_dwordx4 v[{xo(0,t)}:{xo(0,t)+3}], v4, s[{sWK}:{sWK+3}], s48 offen offset:{t*1024}", tag="in")
        s(f"buffer_load_dwordx4 v[{xo(1,t)}:{xo(1,t)+3}], v4, s[{sWSI}:{sWSI+3}], s47 offen offset:{t*1024}", tag="in")
    for g in range(4):
        s(f"buffer_load_dwordx4 v[{WR+4*g}:{WR+4*g+3}], v4, s[{sWK}:{sWK+3}], s49 offen offset:{g*1024}", tag="w")
    stamp(s, 1)
    s.extend(tables("C"))
    s("s_waitcnt lgkmcnt(0)\ns_barrier")
    s("s_cmp_gt_u32 s44, 320\ns_cbranch_scc1 K2_END")
    stamp(s, 2)
    s(f"s_lshl_b32 s{sT0}, s52, 13\nv_add_u32 v10, s{sT0}, v4")
    s(f"s_sub_u32 s{sT0}, s{sW}, 4\ns_lshl_b32 s{sT1}, s{sT0}, 13\ns_add_u32 s{sT1}, s{sT1}, {L_EX}\nv_add_u32 v11, s{sT1}, v4")
    s(f"s_xor_b32 s{sT2}, s{sT0}, 1\ns_lshl_b32 s{sT1}, s{sT2}, 13\ns_add_u32 s{sT1}, s{sT1}, {L_EX}\nv_add_u32 v12, s{sT1}, v4")
    s(f"s_lshl_b32 s{sT0}, s{sT0}, 2\ns_add_u32 s{sT0}, s{sT0}, {L_FLAG}\nv_mov_b32 v15, s{sT0}\ns_lshl_b32 s{sT2}, s{sT2}, 2\ns_add_u32 s{sT2}, s{sT2}, {L_FLAG}\nv_mov_b32 v16, s{sT2}")
    s(f"s_mul_i32 s{sT0}, s52, 6144\ns_add_u32 s{sT0}, s{sT0}, {L_F64}\nv_add_u32 v13, s{sT0}, v4")
    s(f"s_lshl_b32 s{sT0}, s52, 11\ns_add_u32 s{sT0}, s{sT0}, {L_F64 + 2048}\nv_add_u32 v14, s{sT0}, v4")
    for t in range(2):
        s(f"ds_read_b128 v[{FR+4*t}:{FR+4*t+3}], v4 offset:{L_F32 + t*1024}", tag="f32")
        s(f"ds_read_b128 v[{FI+4*t}:{FI+4*t+3}], v4 offset:{L_F32 + 2048 + t*1024}", tag="f32")
        s(f"ds_read_b128 v[{FN+4*t}:{FN+4*t+3}], v4 offset:{L_F32 + 4096 + t*1024}", tag="f32")
    s.wait_ds("f32"); s.wait_vm("in")
    for t in range(2):
        M32(s, AR, xo(0,t), FR+4*t, t == 0); M32(s, AI, xo(0,t), FI+4*t, t == 0)
        M32(s, AR, xo(1,t), FN+4*t, False); M32(s, AI, xo(1,t), FR+4*t, False)
    def f64rd(k, tag):
        b = FS + 12 * (k & 1); va = 13 if k < 2 else 14; o = (k & 1) * 1024
        s(f"ds_read_b128 v[{b}:{b+3}], v{va} offset:{o}", tag=tag)
        s(f"ds_read_b128 v[{b+4}:{b+7}], v{va} offset:{o + 8192}", tag=tag)
        s(f"ds_read_b128 v[{b+8}:{b+11}], v{va} offset:{o + 16384}", tag=tag)
    stamp(s, 3)
    cmul_pass(s, "t1", -1)
    f64rd(0, "a0");
    exchange(s, 1)
    for k in range(4):
        if k < 3: f64rd(k + 1, f"a{k+1}")
        s.wait_ds(f"a{k}")
        if k == 2: s.wait_ds("ex1")
        b = FS + 12 * (k & 1); x = xo if k < 2 else xp; t = k & 1
        M32(s, AR, b, x(0,t), k == 0); M32(s, AI, b+4, x(0,t), k == 0)
        M32(s, AR, b+8, x(1,t), False); M32(s, AI, b, x(1,t), False)
    stamp(s, 4)
    s.wait_vm("w")
    for g in range(4):
        for r in range(4):
            re, im, w, t1, t2 = AR + 4*g + r, AI + 4*g + r, WR + 4*g + r, 224 + r, 228 + r
            s(f"v_lshlrev_b32 v6, 16, v{w}\nv_and_b32 v7, 0xffff0000, v{w}")
            s(f"v_mul_f32 v{t1}, v{re}, v6\nv_mul_f32 v{t2}, v{im}, v6\nv_fma_f32 v{t1}, -v{im}, v7, v{t1}\nv_fmac_f32 v{t2}, v{re}, v7")
        pack(s, g)
    f64rd(0, "b0")
    exchange(s, 2)
    for k in range(4):
        if k < 3: f64rd(k + 1, f"b{k+1}")
        s.wait_ds(f"b{k}")
        if k == 2: s.wait_ds("ex2")
        b = FS + 12 * (k & 1); x = xo if k < 2 else xp; t = k & 1
        M32(s, AR, x(0,t), b, k == 0); M32(s, AI, x(1,t), b, k == 0)
        M32(s, AR, x(1,t), b+4, False); M32(s, AI, x(0,t), b+8, False)
    stamp(s, 5)
    cmul_pass(s, "t3", +1)
    for t in range(2):
        M32(s, AR, xo(0,t), FR+4*t, t == 0); M32(s, AI, xo(1,t), FR+4*t, t == 0)
        M32(s, AR, xo(1,t), FI+4*t, False); M32(s, AI, xo(0,t), FN+4*t, False)
    s(f"s_sub_u32 s{sT0}, s{sW}, 4\ns_mul_i32 s{sT0}, s{sT0}, 5120\ns_add_u32 s{sT0}, s{sT0}, {L_BNC}")
    s(f"v_and_b32 v6, 31, v{vL}\nv_mul_u32_u24 v6, 80, v6\nv_lshrrev_b32 v7, 5, v{vL}\nv_lshl_add_u32 v6, v7, 3, v6\nv_add_u32 v6, s{sT0}, v6")
    s(f"v_lshrrev_b32 v7, 2, v{vL}\nv_mul_u32_u24 v8, 80, v7\nv_and_b32 v9, 3, v{vL}\nv_lshl_add_u32 v8, v9, 4, v8\nv_add_u32 v8, s{sT0}, v8")
    s(f"v_lshlrev_b32 v7, 7, v7\nv_lshl_add_u32 v7, v9, 4, v7")
    for part, A0 in ((0, AR), (1, AI)):
        for g in range(4):
            a = A0 + 4*g; o = 224 + 2 * (g & 1) + 4 * part
            s(f"v_cvt_pk_bf16_f32 v{o}, v{a}, v{a+1}\nv_cvt_pk_bf16_f32 v{o+1}, v{a+2}, v{a+3}")
            s(f"ds_write_b64 v6, v[{o}:{o+1}] offset:{part*2560 + 16*g}", tag="ow")
    s.wait_ds("ow")
    for part in range(2):
        for i in range(2):
            r = XO + 8*part + 4*i
            s(f"ds_read_b128 v[{r}:{r+3}], v8 offset:{part*2560 + i*16*80}", tag=f"or{part}{i}")
    for part, so, sr in ((0, 50, sWK), (1, 51, sWSI)):
        for i in range(2):
            r = XO + 8*part + 4*i
            s.wait_ds(f"or{part}{i}")
            s(f"buffer_store_dwordx4 v[{r}:{r+3}], v7, s[{sr}:{sr+3}], s{so} offen offset:{i*16*128} sc1")
    stamp(s, 6)
    s("s_waitcnt vmcnt(0)")
    s(f"v_mov_b32 v5, 3\nds_write_b32 v15, v5\ns_cmp_eq_u32 s52, 1\ns_cbranch_scc1 K2_COLX")
    s(f"s_mov_b32 s{sT1}, 0\nK2_EX3:\nds_read_b32 v6, v16\ns_add_u32 s{sT1}, s{sT1}, 1\ns_waitcnt lgkmcnt(0)")
    s(f"v_readfirstlane_b32 s{sT2}, v6\ns_cmp_ge_u32 s{sT1}, 1000000\ns_cbranch_scc1 K2_EXD3\ns_cmp_lt_u32 s{sT2}, 3\ns_cbranch_scc1 K2_EX3\nK2_EXD3:")
    s(f"s_and_b32 s{sT0}, s44, 7\ns_lshl_b32 s{sT0}, s{sT0}, 7\ns_add_u32 s{sT0}, s{sT0}, {WS_FLAG}")
    s(f"v_mov_b32 v5, 1\nv_lshlrev_b32 v6, 10, v{vL}\ns_mov_b32 exec_hi, 0")
    s(f"buffer_atomic_add v5, v6, s[{sWS}:{sWS+3}], s{sT0} offen")
    s("s_mov_b64 exec, -1\nK2_COLX:")
    stamp_out(s, 8)
    s("s_endpgm")
    return s

def kernel(name="k2_kernel"):
    h = head()
    h(f"s_cmp_ge_u32 s{sW}, 4\ns_cbranch_scc1 K2_COL")
    g = Stream(); g.extend(h); g.extend(gemm_path())
    lines = finish(g)
    c = Stream(); c("K2_COL:"); c.extend(col_path())
    lines += finish(c)
    lines += ["K2_END:", "s_endpgm"]
    return f".globl {name}\n.p2align 8\n.type {name},@function\n{name}:\n" + "\n".join(lines) + "\n"
```

```python
from emit import *
from common import *

OOB = 0x40000000
sa, sb, sc, sd = 60, 61, 62, 63
sLD, sST, sON = 64, 65, 66
LD = 192
PK = 224
vA, vB, vC = 104, 105, 106
SCR = 65536

def setup(k):
    s = Stream()
    s(f"s_lshl_b32 s{sd}, s{k.sNI}, 3\ns_add_u32 s{sd}, s{sd}, s{k.sMI}")
    s(f"s_lshl_b32 s{k.sGW}, s{sd}, 2\ns_and_b32 s{sa}, s{k.sW}, 3\ns_add_u32 s{k.sGW}, s{k.sGW}, s{sa}")
    s(f"s_lshl_b32 s{sb}, s{sd}, 1\ns_add_u32 s{sb}, s{sb}, s{k.sW}")
    s(f"s_mul_i32 s{sc}, s{sd}, 3\ns_add_u32 s{sc}, s{sc}, s{k.sW}\ns_sub_u32 s{sc}, s{sc}, 2")
    s(f"s_cmp_lt_u32 s{sb}, 384\ns_cselect_b32 s{sON}, 1, 0\ns_cmp_lt_u32 s{k.sW}, 2\ns_cselect_b32 s{sON}, s{sON}, 0")
    s(f"s_cmp_lt_u32 s{sc}, 540\ns_cselect_b32 s{sa}, 2, 0\ns_sub_u32 s{sd}, s{k.sW}, 2\ns_cmp_lt_u32 s{sd}, 3\ns_cselect_b32 s{sON}, s{sa}, s{sON}")
    g = Stream()
    g(f"s_cmp_eq_u32 s{sON}, 1\ns_cbranch_scc0 SIDE_S2")
    g(f"s_mul_hi_u32 s{sa}, s{sb}, {-(-(1 << 32)//6)}\ns_mul_i32 s{sd}, s{sa}, 6\ns_sub_u32 s{sb}, s{sb}, s{sd}")
    g(f"s_lshr_b32 s{sd}, s{sa}, 2\ns_lshl_b32 s{sd}, s{sd}, 7\ns_and_b32 s{sLD}, s{sa}, 3\ns_lshl_b32 s{sLD}, s{sLD}, 3\ns_add_u32 s{sLD}, s{sLD}, s{sd}")
    g(f"s_mul_i32 s{sb}, s{sb}, 56\ns_min_u32 s{sb}, s{sb}, 265")
    g(f"s_mul_i32 s{sLD}, s{sLD}, 642\ns_lshl_b32 s{sd}, s{sb}, 1\ns_add_u32 s{sLD}, s{sLD}, s{sd}")
    g(f"s_lshl_b32 s{sST}, s{sb}, 13\ns_lshr_b32 s{sd}, s{sa}, 3\ns_lshl_b32 s{sd}, s{sd}, 10\ns_add_u32 s{sST}, s{sST}, s{sd}")
    g(f"s_and_b32 s{sd}, s{sa}, 7\ns_lshl_b32 s{sd}, s{sd}, 7\ns_add_u32 s{sST}, s{sST}, s{sd}\ns_add_u32 s{sST}, s{sST}, {WS_WT}")
    g("SIDE_S2:")
    g(f"s_cmp_eq_u32 s{sON}, 2\ns_cbranch_scc0 SIDE_S3")
    g(f"s_mul_hi_u32 s{sa}, s{sc}, {-(-(1 << 32)//10)}\ns_mul_i32 s{sd}, s{sa}, 10\ns_sub_u32 s{sc}, s{sc}, s{sd}")
    g(f"s_mul_i32 s{sLD}, s{sa}, {32*1280}\ns_lshl_b32 s{sd}, s{sc}, 7\ns_add_u32 s{sLD}, s{sLD}, s{sd}")
    g(f"s_mul_i32 s{sST}, s{sc}, {4*74}\ns_add_u32 s{sST}, s{sST}, s{sa}\ns_lshl_b32 s{sST}, s{sST}, 10\ns_add_u32 s{sST}, s{sST}, {WS_WB}")
    g("SIDE_S3:")
    s.group(g)
    return s

def scratch(k, s):
    s(f"s_lshl_b32 s67, s{k.sW}, 13\ns_and_b32 s67, s67, 0x7fff\ns_add_u32 s67, s67, 32768")

def loads(k):
    g = Stream()
    g(f"s_cmp_eq_u32 s{sON}, 1\ns_cbranch_scc0 SIDE_La")
    g(f"v_lshrrev_b32 v{vA}, 3, v{k.vL}\nv_mul_u32_u24 v{vA}, 642, v{vA}\nv_and_b32 v{vB}, 7, v{k.vL}\nv_lshl_add_u32 v{vA}, v{vB}, 4, v{vA}")
    for r in range(4):
        g(f"s_add_u32 s{sa}, s{sLD}, {r*32*642}")
        g.opt(f"buffer_load_dwordx4 v[{LD+8*r}:{LD+8*r+3}], v{vA}, s[{k.sWR}:{k.sWR+3}], s{sa} offen", tag="sideld")
        g.opt(f"buffer_load_dwordx4 v[{LD+8*r+4}:{LD+8*r+7}], v{vA}, s[{k.sWI}:{k.sWI+3}], s{sa} offen", tag="sideld")
    g("SIDE_La:")
    g(f"s_cmp_eq_u32 s{sON}, 2\ns_cbranch_scc0 SIDE_Lb")
    w4 = Stream();
    g(f"v_bfe_u32 v{vA}, v{k.vL}, 4, 1\nv_lshlrev_b32 v{vA}, 1, v{vA}\nv_and_b32 v{vB}, 7, v{k.vL}\nv_xor_b32 v{vA}, v{vA}, v{vB}\nv_lshlrev_b32 v{vA}, 4, v{vA}")
    g(f"v_lshrrev_b32 v{vB}, 3, v{k.vL}\nv_mul_u32_u24 v{vB}, 1280, v{vB}\nv_add_u32 v{vA}, v{vA}, v{vB}\nv_xor_b32 v{vB}, 64, v{vA}")
    g(f"s_sub_u32 s{sb}, s{k.sW}, 2\ns_lshl_b32 s{sb}, s{sb}, 12\ns_add_u32 s{sb}, s{sb}, {32768 + 16384}")
    for i in range(4):
        g(f"s_add_u32 m0, s{sb}, {i*1024}\ns_add_u32 s{sa}, s{sLD}, {i*8*1280}")
        g.opt(f"buffer_load_dwordx4 v{vA + (i & 1)}, s[{k.sWD}:{k.sWD+3}], s{sa} offen lds", tag="sideld")
    g("SIDE_Lb:")
    s = Stream(); s.group(g); return s

def finish(k):
    s = Stream()
    s(f"s_cmp_eq_u32 s{sON}, 2\ns_cbranch_scc0 SIDE_Fa")
    s.wait_opt("sideld")
    s(f"s_sub_u32 s{sb}, s{k.sW}, 2\ns_lshl_b32 s{sb}, s{sb}, 12\ns_add_u32 s{sb}, s{sb}, {32768 + 16384}")
    s(f"v_and_b32 v{vA}, 15, v{k.vL}\nv_lshrrev_b32 v{vB}, 4, v{k.vL}\nv_lshrrev_b32 v{vC}, 2, v{vA}\nv_lshl_add_u32 v{vC}, v{vB}, 2, v{vC}")
    s(f"v_bfe_u32 v{vB}, v{vC}, 1, 1\nv_bfe_u32 v{PK}, v{vC}, 3, 1\nv_lshl_or_b32 v{vB}, v{PK}, 1, v{vB}\nv_lshlrev_b32 v{vB}, 5, v{vB}")
    s(f"v_lshl_add_u32 v{vC}, v{vC}, 7, v{vB}\nv_and_b32 v{vA}, 3, v{vA}\nv_lshl_add_u32 v{vC}, v{vA}, 3, v{vC}\nv_add_u32 v{vC}, s{sb}, v{vC}")
    for nt in range(4):
        s(f"v_xor_b32 v{vA}, {32*nt}, v{vC}")
        s.append(Op(f"ds_read_b64_tr_b16 v[{PK+4*nt}:{PK+4*nt+1}], v{vA}", "raw"))
        s.append(Op(f"ds_read_b64_tr_b16 v[{PK+4*nt+2}:{PK+4*nt+3}], v{vA} offset:2048", "raw"))
    s(f"v_lshlrev_b32 v{vB}, 4, v{k.vL}")
    s.append(Op("s_waitcnt lgkmcnt(0)", "raw"))
    for nt in range(4):
        s(f"s_add_u32 s{sa}, s{sST}, {nt*74*1024}")
        s.opt(f"buffer_store_dwordx4 v[{PK+4*nt}:{PK+4*nt+3}], v{vB}, s[{k.sWS}:{k.sWS+3}], s{sa} offen sc1")
    s("SIDE_Fa:")
    s(f"s_cmp_eq_u32 s{sON}, 1\ns_cbranch_scc0 SIDE_Fb")
    s.wait_opt("sideld")
    s(f"s_lshl_b32 s{sb}, s{k.sW}, 13\ns_add_u32 s{sb}, s{sb}, 32768")
    s(f"s_mov_b32 s{sa}, 0x05040100\ns_mov_b32 s{sc}, 0x07060302")
    s(f"v_lshrrev_b32 v{vA}, 3, v{k.vL}\nv_and_b32 v{vB}, 7, v{k.vL}\nv_xor_b32 v{vA}, v{vA}, v{vB}\nv_lshlrev_b32 v{vA}, 4, v{vA}\nv_lshl_add_u32 v{vA}, v{vB}, 10, v{vA}\nv_add_u32 v{vA}, s{sb}, v{vA}")
    for j in range(8):
        o = PK + 4 * (j & 3)
        for r in range(4):
            re, im = LD + 8*r + (j >> 1), LD + 8*r + 4 + (j >> 1)
            s(f"v_perm_b32 v{o+r}, v{im}, v{re}, s{sa if j % 2 == 0 else sc}")
        s.append(Op(f"ds_write_b128 v{vA}, v[{o}:{o+3}] offset:{j*128}", "raw"))
    s(f"v_lshrrev_b32 v{vB}, 3, v{k.vL}\nv_and_b32 v{vC}, 7, v{k.vL}\nv_lshlrev_b32 v{vA}, 7, v{vB}\nv_lshl_add_u32 v{vA}, v{vC}, 4, v{vA}\nv_add_u32 v{vA}, s{sb}, v{vA}")
    s(f"v_lshlrev_b32 v{vB}, 13, v{vB}\nv_lshl_add_u32 v{vB}, v{vC}, 4, v{vB}")
    s.append(Op("s_waitcnt lgkmcnt(0)", "raw"))
    for i in range(7):
        s(f"v_xor_b32 v{vC}, {16*i}, v{vA}")
        s.append(Op(f"ds_read_b128 v[{LD+4*i}:{LD+4*i+3}], v{vC} offset:{i*1024}", "raw"))
    s.append(Op("s_waitcnt lgkmcnt(0)", "raw"))
    for i in range(7):
        s(f"s_add_u32 s{sa}, s{sST}, {i*8*8192}")
        s.opt(f"buffer_store_dwordx4 v[{LD+4*i}:{LD+4*i+3}], v{vB}, s[{k.sWS}:{k.sWS+3}], s{sa} offen sc1")
    s("SIDE_Fb:")
    return s

def g_task(k):
    s = Stream(); t = 67
    s(f"s_cmp_ge_u32 s{k.sW}, 4\ns_cselect_b32 s{t}, s{k.sGW}, 0x7fffffff")
    s(f"s_mul_hi_u32 s{sa}, s{k.sGW}, {-(-(1 << 32)//20)}\ns_mul_i32 s{sb}, s{sa}, 20\ns_sub_u32 s{sb}, s{k.sGW}, s{sb}")
    s(f"s_mul_i32 s{sc}, s{sa}, 74\ns_add_u32 s{sc}, s{sc}, s{sb}\ns_add_u32 s{sc}, s{sc}, 54\ns_lshl_b32 s{sc}, s{sc}, 10\ns_add_u32 s{sc}, s{sc}, {WS_WB}")
    s(f"s_cmp_lt_u32 s{t}, 800\ns_cselect_b32 s{t}, s{sc}, {OOB}")
    s(f"s_lshl_b32 s{sa}, s{sa}, 4\ns_lshl_b32 s{sb}, s{sb}, 4")
    a, b, c, d, e, f_, g_, P = 106, 107, 108, 109, 110, 111, 112, 92
    s(f"v_and_b32 v{a}, 15, v{k.vL}\nv_add_u32 v{a}, s{sa}, v{a}\nv_cvt_f32_u32 v{b}, v{a}")
    s(f"v_lshrrev_b32 v{c}, 4, v{k.vL}\nv_lshl_add_u32 v{c}, v{c}, 2, s{sb}")
    s(f"s_mov_b32 s{sa}, {f2h(-640.0)}")
    for jj in range(4):
        s(f"v_add_u32 v{d}, {jj}, v{c}\nv_cvt_f32_u32 v{d}, v{d}\nv_mul_f32 v{d}, v{d}, v{b}")
        s(f"v_mul_f32 v{e}, {INV640}, v{d}\nv_floor_f32 v{e}, v{e}\nv_fma_f32 v{e}, v{e}, s{sa}, v{d}\nv_mul_f32 v{e}, {INV640}, v{e}")
        s(f"v_cos_f32 v{f_}, v{e}\nv_sin_f32 v{g_}, v{e}\nv_add_f32 v{f_}, v{f_}, v{f_}\nv_mul_f32 v{g_}, -2.0, v{g_}\nv_cvt_pk_bf16_f32 v{P+jj}, v{f_}, v{g_}")
    s(f"v_and_b32 v{d}, 1, v{a}\nv_lshlrev_b32 v{d}, 31, v{d}\nv_or_b32 v{d}, 0x3f803f80, v{d}")
    g = Stream(); g(f"v_cmp_eq_u32 vcc, 0, v{c}\nv_cndmask_b32 v{P}, v{P}, v{d}, vcc"); s.group(g)
    s(f"v_lshlrev_b32 v{b}, 4, v{k.vL}")
    s(f"buffer_store_dwordx4 v[{P}:{P+3}], v{b}, s[{k.sWS}:{k.sWS+3}], s{t} offen sc1")
    return s

def schedule(k, enable=("g", "wd", "wt")):
    ex = {}
    def add(key, st): ex.setdefault(key, Stream()).extend(st)
    add((3, "A"), setup(k))
    if "g" in enable:
        g = g_task(k); h = len(g) // 2
        add((4, "A"), g[:h]); add((4, "B"), g[h:])
    if "wd" in enable or "wt" in enable:
        add((7, "B"), loads(k))
        ex["end"] = finish(k)
    return ex
```

```python
import sys
from common import *
import k1, side, k2

HDR = open("cdna_kernels/%s.s.ref" % NAME).read().split("; Override launch")[0]

SIDE = ("g", "wd", "wt")
def build(parts=("k1", "k2")):
    L = []
    body = ""
    desc = ""
    if "k1" in parts:
        L.append(f"; @launch kernel=k1_kernel grid=(256,1,1) block=(512,1,1) lds={k1.LDS_BYTES}")
        body += k1.kernel(side=side.schedule(k1, SIDE)); desc += descriptor("k1_kernel")
    if "k2" in parts:
        L.append(f"; @launch kernel=k2_kernel grid=(256,1,1) block=(512,1,1) lds={k2.LDS_BYTES}")
        body += k2.kernel(); desc += descriptor("k2_kernel")
    txt = HDR + "\n".join(L) + '\n.amdgcn_target "amdgcn-amd-amdhsa--gfx950"\n.text\n' + body + '.section .rodata,"a"\n' + desc
    return txt

if __name__ == "__main__":
    out = sys.argv[1] if len(sys.argv) > 1 else "out.s"
    if "--stamps" in sys.argv: k1.STAMPS = True; k2.STAMPS = True
    for a in sys.argv:
        if a.startswith("--side="): SIDE = tuple(x for x in a[7:].split(",") if x)
        if a.startswith("--opt="):
            for kv in a[6:].split(","):
                k_, v_ = kv.split("="); k1.OPT[k_] = int(v_); k2.OPT[k_] = int(v_)
    parts = ("k1",) if "--k1only" in sys.argv else ("k1", "k2")
    open(out, "w").write(build(parts))
```

```python
from emit import *
from common import *

sX, sOUT, sWS, sWK, sDBG, sWSI = 8, 12, 16, 20, 24, 28
sW, sMB, sNB = 40, 41, 42
sH, sB = 44, 48
sT0, sT1, sT2, sT3 = 54, 55, 56, 57
vL = 1
RED = 21504
L_T1 = 0
L_T3 = L_T1 + 16384
L_F64 = L_T3 + 16384
L_F32 = L_F64 + 24576
L_FLAG = L_F32 + 6144
L_GEMM = L_FLAG + 128
LDS_BYTES = L_GEMM + 4 * RED
L_EX = L_GEMM
L_BNC = L_EX + 32768

STAMPS = False
OPT = {}
WS_STAMP = 0x15A0000
def stamp(s, i):
    if STAMPS: s(f"s_memrealtime s[{84+2*i}:{85+2*i}]")
def stamp_out(s, n, gemm=False):
    if not STAMPS: return
    s("s_waitcnt vmcnt(0)"); stamp(s, n - 1); s("s_waitcnt lgkmcnt(0)")
    s(f"s_lshl_b32 s{sT1}, s2, 3\ns_add_u32 s{sT1}, s{sT1}, s{sW}\ns_lshl_b32 s{sT1}, s{sT1}, 5\ns_add_u32 s{sT1}, s{sT1}, {WS_STAMP}")
    for i in range(n): s(f"v_mov_b32 v{20+i}, s{84+2*i}")
    s("s_mov_b64 exec, 1")
    s(f"buffer_store_dwordx4 v[20:23], off, s[{sWS}:{sWS+3}], s{sT1}")
    s(f"buffer_store_dwordx4 v[24:27], off, s[{sWS}:{sWS+3}], s{sT1} offset:16")
    if OPT.get("dbgout") and gemm:
        s(f"s_cmp_lg_u32 s{sW}, 0\ns_cbranch_scc1 K2_NODBG")
        s("s_load_dwordx2 s[70:71], s[0:1], 64\ns_waitcnt lgkmcnt(0)")
        srd(s, sDBG, 70, 256)
        s(f"s_lshl_b32 s{sT1}, s2, 8\ns_add_u32 s{sT1}, s{sT1}, 0x1590000\ns_mov_b32 s{sT2}, 0x1590000")
        s(f"buffer_load_dwordx4 v[28:31], off, s[{sWS}:{sWS+3}], s{sT1}\nbuffer_load_dwordx4 v[32:35], off, s[{sWS}:{sWS+3}], s{sT1} offset:16")
        s(f"buffer_load_dword v36, off, s[{sWS}:{sWS+3}], s{sT2}\ns_waitcnt vmcnt(0)\nv_subrev_u32 v36, 200, v36")
        for i in range(8):
            s(f"v_sub_u32 v37, v{28+i}, v36\nbuffer_atomic_umax v37, off, s[{sDBG}:{sDBG+3}], 0 offset:{4*i}")
            s(f"v_sub_u32 v38, v{20+i}, v36\nbuffer_atomic_umax v38, off, s[{sDBG}:{sDBG+3}], 0 offset:{32+4*i}")
            s("s_waitcnt vmcnt(0)")
        s("K2_NODBG:")

def head():
    s = Stream()
    if STAMPS: s("s_memrealtime s[84:85]")
    s("s_cmp_ge_u32 s2, 256\ns_cbranch_scc1 K2_END")
    s("s_load_dwordx2 s[60:61], s[0:1], 0\ns_load_dwordx2 s[64:65], s[0:1], 56\ns_load_dwordx2 s[68:69], s[0:1], 72")
    s(f"v_and_b32 v{vL}, 63, v0\nv_lshrrev_b32 v2, 6, v0")
    s("s_and_b32 s3, s2, 7\ns_lshr_b32 s4, s2, 3")
    s(f"v_readfirstlane_b32 s{sW}, v2")
    s(f"s_and_b32 s5, s3, 3\ns_lshl_b32 s5, s5, 3\ns_and_b32 s6, s4, 7\ns_add_u32 s{sMB}, s5, s6")
    s(f"s_lshr_b32 s5, s3, 2\ns_lshl_b32 s5, s5, 2\ns_lshr_b32 s6, s4, 3\ns_add_u32 s{sNB}, s5, s6")
    s(f"v_lshlrev_b32 v2, 2, v{vL}\nv_and_b32 v2, 31, v2\nv_add_u32 v2, {L_FLAG}, v2\nv_mov_b32 v3, 0\nds_write_b32 v2, v3")
    s("s_waitcnt lgkmcnt(0)")
    srd(s, sX, 60, S * D * 2)
    srd(s, sOUT, 64, S * D * 2)
    srd(s, sWS, 68, WS_SIZE)
    srd(s, sWK, 68, WS_SIZE)
    srd(s, sWSI, 68, WS_SIZE)
    return s

TT = 176
def trig(s, dst_c, dst_s, src, scale):
    s(f"v_cvt_f32_u32 v9, {src}\nv_mul_f32 v9, {scale}, v9\nv_cos_f32 v{dst_c}, v9\nv_sin_f32 v{dst_s}, v9")

def tables(V):
    s = Stream()
    R2048, R64, R32 = f2h(1/2048), f2h(1/64), f2h(1/32)
    a, b, c, d = TT, TT + 8, TT + 16, TT + 32
    s(f"v_and_b32 v12, 31, v{vL}\nv_lshrrev_b32 v13, 5, v{vL}\nv_lshlrev_b32 v14, 4, v{vL}")
    s(f"s_lshl_b32 s{sT2}, s{sW}, 3\ns_lshl_b32 s{sT3}, s{sW}, 11\nv_add_u32 v15, s{sT3}, v14")
    s(f"v_lshl_add_u32 v16, v13, 2, s{sT2}")
    for r in range(4):
        s(f"v_add_u32 v17, {r}, v16\nv_mul_u32_u24 v17, v17, v12"); trig(s, a + r, a + 4 + r, "v17", R2048)
    s(f"ds_write_b128 v15, v[{a}:{a+3}] offset:{L_T1}\nds_write_b128 v15, v[{a+4}:{a+7}] offset:{L_T1 + 1024}")
    s(f"s_lshr_b32 s{sT2}, s{sW}, 2\ns_lshl_b32 s{sT2}, s{sT2}, 5\nv_add_u32 v18, s{sT2}, v12")
    s(f"s_and_b32 s{sT2}, s{sW}, 3\ns_lshl_b32 s{sT2}, s{sT2}, 3\nv_lshl_add_u32 v16, v13, 2, s{sT2}")
    for r in range(4):
        s(f"v_add_u32 v17, {r}, v16\nv_mul_u32_u24 v17, v17, v18"); trig(s, b + r, b + 4 + r, "v17", R2048)
    sc = f2h(1.0 / (640 * 2048))
    for r in range(8): s(f"v_mul_f32 v{b+r}, {sc}, v{b+r}")
    s(f"ds_write_b128 v15, v[{b}:{b+3}] offset:{L_T3}\nds_write_b128 v15, v[{b+4}:{b+7}] offset:{L_T3 + 1024}")
    def dft_frag(g, mask, scale):
        for j in range(8):
            g(f"v_add_u32 v17, {8*(j >> 2) + (j & 3)}, v16\nv_mul_u32_u24 v17, v17, v18\nv_and_b32 v17, {mask}, v17"); trig(g, c + j, c + 8 + j, "v17", scale)
        for jj in range(4):
            g(f"v_cvt_pk_bf16_f32 v{d+jj}, v{c+2*jj}, v{c+1+2*jj}\nv_cvt_pk_bf16_f32 v{d+8+jj}, v{c+8+2*jj}, v{c+9+2*jj}")
            g(f"v_xor_b32 v{d+4+jj}, 0x80008000, v{d+8+jj}")
    s(f"s_and_b32 s{sT2}, s{sW}, 3\ns_lshl_b32 s{sT2}, s{sT2}, 4\nv_lshl_add_u32 v16, v13, 2, s{sT2}")
    dft_frag(s, 63, R64)
    s(f"s_lshl_b32 s{sT3}, s{sW}, 10\ns_add_u32 s{sT3}, s{sT3}, {L_F64}\nv_add_u32 v15, s{sT3}, v14")
    s(f"ds_write_b128 v15, v[{d}:{d+3}]\nds_write_b128 v15, v[{d+4}:{d+7}] offset:8192\nds_write_b128 v15, v[{d+8}:{d+11}] offset:16384")
    if V == "G": return s
    s(f"s_cmp_lt_u32 s{sW}, 6\ns_cbranch_scc1 K2_NOF32{V}")
    s(f"s_sub_u32 s{sT1}, s{sW}, 6\ns_lshl_b32 s{sT2}, s{sT1}, 4\nv_lshl_add_u32 v16, v13, 2, s{sT2}\nv_mov_b32 v18, v12")
    dft_frag(s, 31, R32)
    s(f"s_lshl_b32 s{sT3}, s{sT1}, 10\ns_add_u32 s{sT3}, s{sT3}, {L_F32}\nv_add_u32 v15, s{sT3}, v14")
    s(f"ds_write_b128 v15, v[{d}:{d+3}]\nds_write_b128 v15, v[{d+4}:{d+7}] offset:2048\nds_write_b128 v15, v[{d+8}:{d+11}] offset:4096")
    s(f"K2_NOF32{V}:")
    return s

SETS = [20, 56, 92, 128]
ACC = 176
XR, EA, EG = 128, 164, 169
NH = 14

def gemm_path():
    s = Stream()
    s(f"v_lshlrev_b32 v2, 4, v{vL}")
    s(f"s_mul_i32 s{sT0}, s{sW}, 14\ns_cmp_eq_u32 s{sW}, 3\ns_cselect_b32 s{sT1}, 1, 0\ns_sub_u32 s{sT0}, s{sT0}, s{sT1}")
    s(f"s_lshl_b32 s{sT1}, s{sMB}, 2\ns_mul_i32 s{sT1}, s{sT1}, 54\ns_add_u32 s{sT1}, s{sT1}, s{sT0}\ns_lshl_b32 s{sT1}, s{sT1}, 10\ns_add_u32 s{sH}, s{sT1}, {WS_H}")
    for st in range(1, 4): s(f"s_add_u32 s{sH+st}, s{sH}, {st*54*1024}")
    s(f"s_mul_i32 s{sT1}, s{sNB}, {5*74}\ns_add_u32 s{sT1}, s{sT1}, s{sT0}\ns_lshl_b32 s{sT1}, s{sT1}, 10\ns_add_u32 s{sB}, s{sT1}, {WS_WB}")
    for dt in range(1, 5): s(f"s_add_u32 s{sB+dt}, s{sB}, {dt*74*1024}")
    def loads(u):
        st0 = SETS[u % 4]
        g = Stream()
        if u == NH - 1:
            g(f"s_cmp_ge_u32 s{sW}, 2\ns_cselect_b32 s{sWK+2}, 0, s{sWK+2}")
        if u < NH:
            order = [("h", 0), ("b", 0), ("h", 1), ("b", 1), ("h", 2), ("b", 2), ("h", 3), ("b", 3), ("b", 4)]
            for kind, i in order:
                r = st0 + 4 * i if kind == "h" else st0 + 16 + 4 * i
                so = sH + i if kind == "h" else sB + i
                g(f"buffer_load_dwordx4 v[{r}:{r+3}], v2, s[{sWK}:{sWK+3}], s{so} offen", tag=f"ld{u}")
            g(f"s_add_u32 s{sWK}, s{sWK}, 1024\ns_addc_u32 s{sWK+1}, s{sWK+1}, 0")
        else:
            z = u - NH
            if z == 0:
                g(f"s_mul_i32 s{sT1}, s{sNB}, {5*74}\ns_mul_i32 s{sT0}, s{sW}, 5\ns_add_u32 s{sT1}, s{sT1}, s{sT0}\ns_add_u32 s{sT1}, s{sT1}, 54")
                g(f"s_lshl_b32 s{sT1}, s{sT1}, 10\ns_add_u32 s{sB}, s{sT1}, {WS_WB}")
                for dt in range(1, 5): g(f"s_add_u32 s{sB+dt}, s{sB}, {dt*74*1024}")
            if z == 4:
                for dt in range(5): g(f"s_add_u32 s{sB+dt}, s{sB+dt}, 4096")
            for dt in range(5):
                r = st0 + 16 + 4 * dt
                g(f"buffer_load_dwordx4 v[{r}:{r+3}], v2, s[{sWS}:{sWS+3}], s{sB+dt} offen offset:{(z & 3)*1024}", tag=f"ld{u}")
        return g
    def mfmas(u):
        st0 = SETS[u % 4]
        g = Stream()
        for st in range(4):
            for dt in range(5):
                acc = ACC + 4 * (5 * st + dt)
                c = "0" if u == 0 else f"v[{acc}:{acc+3}]"
                g(f"v_mfma_f32_16x16x32_bf16 v[{acc}:{acc+3}], v[{st0+16+4*dt}:{st0+19+4*dt}], v[{st0+4*st}:{st0+4*st+3}], {c}")
        return g
    first = Stream()
    for u in range(3): first.extend(loads(u))
    s.extend(merge(first, [tables("G")], front=False, on="vm"))
    stamp(s, 1)
    s("s_waitcnt lgkmcnt(0)\ns_barrier")
    def epi_addr():
        g = Stream()
        g(f"s_lshl_b32 s{sT2}, s{sW}, 4")
        for i in range(5):
            g(f"v_add_u32 v6, {64*i}, v{vL}\nv_mul_u32_u24 v7, 3277, v6\nv_lshrrev_b32 v7, 16, v7")
            g(f"v_mul_u32_u24 v8, 20, v7\nv_sub_u32 v8, v6, v8\nv_add_u32 v7, s{sT2}, v7")
            g(f"v_mul_u32_u24 v9, 336, v7\nv_lshl_add_u32 v9, v8, 4, v9\nv_add_u32 v{EA+i}, {L_GEMM}, v9")
            g(f"v_mul_u32_u24 v9, 1280, v7\nv_lshl_add_u32 v{EG+i}, v8, 3, v9")
        g(f"s_lshl_b32 s{sT2}, s{sMB}, 6\ns_mul_i32 s{sT2}, s{sT2}, 1280\ns_mul_i32 s{sT3}, s{sNB}, 160\ns_add_u32 s58, s{sT2}, s{sT3}")
        return g
    def z_addr():
        g = Stream()
        g(f"v_lshrrev_b32 v6, 3, v{vL}\nv_lshlrev_b32 v6, 12, v6\nv_bfe_u32 v7, v{vL}, 4, 1\nv_lshlrev_b32 v7, 1, v7\nv_and_b32 v8, 7, v{vL}\nv_xor_b32 v7, v7, v8")
        g(f"v_lshl_add_u32 v16, v7, 4, v6\nv_xor_b32 v17, 64, v16")
        g(f"s_mul_i32 s53, s{sW}, {160*4096}\ns_lshl_b32 s{sT3}, s{sMB}, 7\ns_add_u32 s53, s53, s{sT3}\ns_add_u32 s53, s53, {WS_ZT}")
        g(f"s_mul_i32 s59, s{sW}, {RED}\ns_add_u32 s59, s59, {L_GEMM}")
        g(f"v_and_b32 v8, 15, v{vL}\nv_lshrrev_b32 v9, 4, v{vL}\nv_lshrrev_b32 v10, 2, v8\nv_lshl_add_u32 v10, v9, 3, v10")
        g(f"v_bfe_u32 v11, v{vL}, 3, 1\nv_and_b32 v12, 1, v9\nv_lshl_or_b32 v11, v12, 1, v11")
        g(f"v_lshlrev_b32 v11, 5, v11\nv_lshl_add_u32 v10, v10, 7, v11\nv_and_b32 v12, 3, v8\nv_lshl_add_u32 v10, v12, 3, v10\nv_add_u32 v12, s59, v10")
        for st in range(1, 4): g(f"v_xor_b32 v{12+st}, {32*st}, v12")
        return g
    def poll_issue():
        g = Stream()
        g(f"v_and_b32 v3, 7, v{vL}\nv_mov_b32 v4, 40\nv_mov_b32 v5, 41")
        h = Stream(); h("v_cmp_eq_u32 vcc, 0, v3\nv_cndmask_b32 v4, v4, v5, vcc"); g.group(h)
        g(f"v_lshlrev_b32 v3, 7, v3\ns_and_b32 s{sT3}, s2, 31\ns_lshl_b32 s{sT3}, s{sT3}, 10\ns_add_u32 s43, s{sT3}, {WS_FLAG}")
        g(f"s_cmp_eq_u32 s{sW}, 0\ns_cselect_b32 s{sT3}, s43, 0x40000000")
        g(f"buffer_load_dword v5, v3, s[{sWS}:{sWS+3}], s{sT3} offen sc1", tag="poll")
        return g
    extra = {5: epi_addr(), 7: z_addr(), 12: poll_issue()}
    for u in range(NH):
        s.wait_vm(f"ld{u}")
        s.extend(merge(mfmas(u), [loads(u + 3), extra.get(u, Stream())], front=False))
        if u == 0: stamp(s, 2)
    stamp(s, 3)
    s.extend(loads(NH + 3))
    g = Stream()
    g(f"s_cmp_lg_u32 s{sW}, 0\ns_cbranch_scc1 K2_SPUN")
    g.wait_vm("poll")
    g(f"v_cmp_ne_u32 vcc, v4, v5\ns_cbranch_vccz K2_SPUN\ns_mov_b32 s{sT1}, 0\nK2_SPINL:\ns_sleep 4")
    g.append(Op(f"buffer_load_dword v5, v3, s[{sWS}:{sWS+3}], s43 offen sc1", "raw"))
    g(f"s_add_u32 s{sT1}, s{sT1}, 1"); g.append(Op("s_waitcnt vmcnt(0)", "raw"))
    g(f"v_cmp_ne_u32 vcc, v4, v5\ns_cmp_ge_u32 s{sT1}, 100000\ns_cbranch_scc1 K2_SPUN\ns_cbranch_vccnz K2_SPINL\nK2_SPUN:")
    s.group(g)
    s("s_barrier")
    stamp(s, 4)
    for i in range(20):
        s(f"s_add_u32 m0, s59, {i*1024}")
        s(f"buffer_load_dwordx4 v{16 + (i & 1)}, s[{sWS}:{sWS+3}], s53 offen sc1 lds", tag=f"z{i//4}")
        if i < 19: s(f"s_add_u32 s53, s53, {8*4096}")
    def zreads(z):
        g = Stream(); base = SETS[(NH + z) % 4]
        for st in range(4):
            for jh in range(2):
                g(f"ds_read_b64_tr_b16 v[{base+4*st+2*jh}:{base+4*st+2*jh+1}], v{12+st} offset:{z*4096 + jh*512}", tag=f"zr{z}")
        return g
    s.wait_vm("z0"); s.extend(zreads(0))
    for z in range(5):
        nxt = Stream()
        if z < 4:
            nxt.wait_vm(f"z{z+1}"); nxt.extend(zreads(z + 1))
        more = Stream()
        if z == 1: more.extend(loads(NH + 4))
        if z == 2:
            for i in range(5):
                more(f"buffer_load_dwordx2 v[{XR+2*i}:{XR+1+2*i}], v{EG+i}, s[{sX}:{sX+3}], s58 offen", tag="xld")
        s.wait_ds(f"zr{z}"); s.wait_vm(f"ld{NH+z}")
        s.extend(merge(mfmas(NH + z), [nxt, more]))
    stamp(s, 5)
    s(f"v_and_b32 v8, 15, v{vL}\nv_lshrrev_b32 v9, 4, v{vL}\nv_mul_u32_u24 v10, 336, v8\nv_lshl_add_u32 v10, v9, 4, v10\nv_add_u32 v10, s59, v10")
    for st in range(4):
        for dt in range(5):
            acc = ACC + 4 * (5 * st + dt)
            s(f"ds_write_b128 v10, v[{acc}:{acc+3}] offset:{st*16*336 + dt*64}", tag="rw")
    s.wait_ds("all"); s("s_barrier")
    RB = 20
    for i in range(5):
        for p in range(4):
            r = RB + 16 * i + 4 * p
            s(f"ds_read_b128 v[{r}:{r+3}], v{EA+i} offset:{p*RED}", tag=f"rr{i}")
    s.wait_vm("xld")
    for i in range(5):
        r = RB + 16 * i
        s.wait_ds(f"rr{i}")
        for c in range(4):
            s(f"v_add_f32 v{r+c}, v{r+c}, v{r+4+c}\nv_add_f32 v{r+8+c}, v{r+8+c}, v{r+12+c}\nv_add_f32 v{r+c}, v{r+c}, v{r+8+c}")
        x0, x1 = XR + 2 * i, XR + 2 * i + 1
        s(f"v_lshlrev_b32 v3, 16, v{x0}\nv_and_b32 v4, 0xffff0000, v{x0}\nv_lshlrev_b32 v5, 16, v{x1}\nv_and_b32 v6, 0xffff0000, v{x1}")
        s(f"v_add_f32 v{r}, v{r}, v3\nv_add_f32 v{r+1}, v{r+1}, v4\nv_add_f32 v{r+2}, v{r+2}, v5\nv_add_f32 v{r+3}, v{r+3}, v6")
        s(f"v_cvt_pk_bf16_f32 v{r+4}, v{r}, v{r+1}\nv_cvt_pk_bf16_f32 v{r+5}, v{r+2}, v{r+3}")
        s(f"buffer_store_dwordx2 v[{r+4}:{r+5}], v{EG+i}, s[{sOUT}:{sOUT+3}], s58 offen")
    stamp_out(s, 8, True)
    s("s_endpgm")
    return s

XO, XP = 20, 36
WR = 52
FR, FI, FN = 84, 92, 100
TW = 108
AR, AI = 128, 144
FS = 192
def xo(part, t): return XO + 4 * (2 * part + t)
def xp(part, t): return XP + 4 * (2 * part + t)

def pack(s, g):
    t = g >> 1; o = 2 * (g & 1)
    s(f"v_cvt_pk_bf16_f32 v{xo(0,t)+o}, v224, v225\nv_cvt_pk_bf16_f32 v{xo(0,t)+o+1}, v226, v227")
    s(f"v_cvt_pk_bf16_f32 v{xo(1,t)+o}, v228, v229\nv_cvt_pk_bf16_f32 v{xo(1,t)+o+1}, v230, v231")

def cmul_pass(s, name, sign):
    table = {"t1": L_T1, "t3": L_T3}[name]
    def rd(g):
        b = TW + 8 * (g & 1)
        s(f"ds_read_b128 v[{b}:{b+3}], v10 offset:{table + g*2048}", tag=f"{name}{g}")
        s(f"ds_read_b128 v[{b+4}:{b+7}], v10 offset:{table + g*2048 + 1024}", tag=f"{name}{g}")
    rd(0)
    for g in range(4):
        if g < 3: rd(g + 1)
        s.wait_ds(f"{name}{g}")
        b = TW + 8 * (g & 1)
        for r in range(4):
            re, im, c, sn, t1, t2 = AR + 4*g + r, AI + 4*g + r, b + r, b + 4 + r, 224 + r, 228 + r
            s(f"v_mul_f32 v{t1}, v{re}, v{c}\nv_mul_f32 v{t2}, v{im}, v{c}")
            if sign < 0: s(f"v_fmac_f32 v{t1}, v{im}, v{sn}\nv_fma_f32 v{t2}, -v{re}, v{sn}, v{t2}")
            else: s(f"v_fma_f32 v{t1}, -v{im}, v{sn}, v{t1}\nv_fmac_f32 v{t2}, v{re}, v{sn}")
        pack(s, g)

def exchange(s, n):
    for i in range(4):
        s(f"ds_write_b128 v11, v[{XO+4*i}:{XO+4*i+3}] offset:{(n-1)*4096 + i*1024}")
    s(f"v_mov_b32 v5, {n}\ns_waitcnt lgkmcnt(0)\nds_write_b32 v15, v5")
    s(f"s_mov_b32 s{sT1}, 0\nK2_EX{n}:\nds_read_b32 v6, v16\ns_add_u32 s{sT1}, s{sT1}, 1\ns_waitcnt lgkmcnt(0)")
    s(f"v_readfirstlane_b32 s{sT2}, v6\ns_cmp_ge_u32 s{sT1}, 1000000\ns_cbranch_scc1 K2_EXD{n}\ns_cmp_lt_u32 s{sT2}, {n}\ns_cbranch_scc1 K2_EX{n}\nK2_EXD{n}:")
    for i in range(4):
        s(f"ds_read_b128 v[{XP+4*i}:{XP+4*i+3}], v12 offset:{(n-1)*4096 + i*1024}", tag=f"ex{n}")

def M32(s, d, a, b, first):
    c = "0" if first else f"v[{d}:{d+15}]"
    s(f"v_mfma_f32_32x32x16_bf16 v[{d}:{d+15}], v[{a}:{a+3}], v[{b}:{b+3}], {c}")

def col_path():
    s = Stream()
    if OPT.get("prio", 1): s("s_setprio 3")
    s(f"s_sub_u32 s{sT0}, s{sW}, 4\ns_lshr_b32 s{sT0}, s{sT0}, 1\ns_lshl_b32 s{sT0}, s{sT0}, 8\ns_add_u32 s44, s2, s{sT0}\ns_and_b32 s52, s{sW}, 1")
    s("s_cmp_eq_u32 s44, 320\ns_cselect_b32 s45, 1, 0\ns_cselect_b32 s46, 0, s44")
    s(f"s_cmp_eq_u32 s46, 0\ns_cselect_b32 s{sWSI+2}, 0, s{sWSI+2}")
    s(f"s_cmp_gt_u32 s44, 320\ns_cselect_b32 s{sWSI+2}, 0, s{sWSI+2}\ns_cselect_b32 s53, 0, s{sWS+2}")
    s(f"s_mov_b32 s{sWK+2}, s53")
    s(f"s_lshl_b32 s47, s46, 13\ns_add_u32 s47, s47, {WS_AT}\ns_lshl_b32 s{sT0}, s52, 11\ns_add_u32 s47, s47, s{sT0}")
    s(f"s_lshl_b32 s{sT0}, s45, 12\ns_add_u32 s48, s47, s{sT0}\ns_add_u32 s47, s47, 4096")
    s(f"s_lshl_b32 s49, s44, 13\ns_add_u32 s49, s49, {WS_WT}\ns_lshl_b32 s{sT0}, s52, 12\ns_add_u32 s49, s49, s{sT0}")
    s(f"s_lshl_b32 s50, s46, 1\ns_add_u32 s50, s50, s45\ns_lshl_b32 s50, s50, 12\ns_add_u32 s50, s50, {WS_ZT}")
    s(f"s_lshl_b32 s{sT0}, s52, 6\ns_add_u32 s50, s50, s{sT0}\ns_add_u32 s51, s50, 4096")
    s(f"v_lshlrev_b32 v4, 4, v{vL}")
    for t in range(2):
        s(f"buffer_load_dwordx4 v[{xo(0,t)}:{xo(0,t)+3}], v4, s[{sWK}:{sWK+3}], s48 offen offset:{t*1024}", tag="in")
        s(f"buffer_load_dwordx4 v[{xo(1,t)}:{xo(1,t)+3}], v4, s[{sWSI}:{sWSI+3}], s47 offen offset:{t*1024}", tag="in")
    for g in range(4):
        s(f"buffer_load_dwordx4 v[{WR+4*g}:{WR+4*g+3}], v4, s[{sWK}:{sWK+3}], s49 offen offset:{g*1024}", tag="w")
    stamp(s, 1)
    s.extend(tables("C"))
    s("s_waitcnt lgkmcnt(0)\ns_barrier")
    s("s_cmp_gt_u32 s44, 320\ns_cbranch_scc1 K2_END")
    stamp(s, 2)
    s(f"s_lshl_b32 s{sT0}, s52, 13\nv_add_u32 v10, s{sT0}, v4")
    s(f"s_sub_u32 s{sT0}, s{sW}, 4\ns_lshl_b32 s{sT1}, s{sT0}, 13\ns_add_u32 s{sT1}, s{sT1}, {L_EX}\nv_add_u32 v11, s{sT1}, v4")
    s(f"s_xor_b32 s{sT2}, s{sT0}, 1\ns_lshl_b32 s{sT1}, s{sT2}, 13\ns_add_u32 s{sT1}, s{sT1}, {L_EX}\nv_add_u32 v12, s{sT1}, v4")
    s(f"s_lshl_b32 s{sT0}, s{sT0}, 2\ns_add_u32 s{sT0}, s{sT0}, {L_FLAG}\nv_mov_b32 v15, s{sT0}\ns_lshl_b32 s{sT2}, s{sT2}, 2\ns_add_u32 s{sT2}, s{sT2}, {L_FLAG}\nv_mov_b32 v16, s{sT2}")
    s(f"s_mul_i32 s{sT0}, s52, 6144\ns_add_u32 s{sT0}, s{sT0}, {L_F64}\nv_add_u32 v13, s{sT0}, v4")
    s(f"s_lshl_b32 s{sT0}, s52, 11\ns_add_u32 s{sT0}, s{sT0}, {L_F64 + 2048}\nv_add_u32 v14, s{sT0}, v4")
    for t in range(2):
        s(f"ds_read_b128 v[{FR+4*t}:{FR+4*t+3}], v4 offset:{L_F32 + t*1024}", tag="f32")
        s(f"ds_read_b128 v[{FI+4*t}:{FI+4*t+3}], v4 offset:{L_F32 + 2048 + t*1024}", tag="f32")
        s(f"ds_read_b128 v[{FN+4*t}:{FN+4*t+3}], v4 offset:{L_F32 + 4096 + t*1024}", tag="f32")
    s.wait_ds("f32"); s.wait_vm("in")
    for t in range(2):
        M32(s, AR, xo(0,t), FR+4*t, t == 0); M32(s, AI, xo(0,t), FI+4*t, t == 0)
        M32(s, AR, xo(1,t), FN+4*t, False); M32(s, AI, xo(1,t), FR+4*t, False)
    def f64rd(k, tag):
        b = FS + 12 * (k & 1); va = 13 if k < 2 else 14; o = (k & 1) * 1024
        s(f"ds_read_b128 v[{b}:{b+3}], v{va} offset:{o}", tag=tag)
        s(f"ds_read_b128 v[{b+4}:{b+7}], v{va} offset:{o + 8192}", tag=tag)
        s(f"ds_read_b128 v[{b+8}:{b+11}], v{va} offset:{o + 16384}", tag=tag)
    stamp(s, 3)
    cmul_pass(s, "t1", -1)
    f64rd(0, "a0");
    exchange(s, 1)
    for k in range(4):
        if k < 3: f64rd(k + 1, f"a{k+1}")
        s.wait_ds(f"a{k}")
        if k == 2: s.wait_ds("ex1")
        b = FS + 12 * (k & 1); x = xo if k < 2 else xp; t = k & 1
        M32(s, AR, b, x(0,t), k == 0); M32(s, AI, b+4, x(0,t), k == 0)
        M32(s, AR, b+8, x(1,t), False); M32(s, AI, b, x(1,t), False)
    stamp(s, 4)
    s.wait_vm("w")
    for g in range(4):
        for r in range(4):
            re, im, w, t1, t2 = AR + 4*g + r, AI + 4*g + r, WR + 4*g + r, 224 + r, 228 + r
            s(f"v_lshlrev_b32 v6, 16, v{w}\nv_and_b32 v7, 0xffff0000, v{w}")
            s(f"v_mul_f32 v{t1}, v{re}, v6\nv_mul_f32 v{t2}, v{im}, v6\nv_fma_f32 v{t1}, -v{im}, v7, v{t1}\nv_fmac_f32 v{t2}, v{re}, v7")
        pack(s, g)
    f64rd(0, "b0")
    exchange(s, 2)
    for k in range(4):
        if k < 3: f64rd(k + 1, f"b{k+1}")
        s.wait_ds(f"b{k}")
        if k == 2: s.wait_ds("ex2")
        b = FS + 12 * (k & 1); x = xo if k < 2 else xp; t = k & 1
        M32(s, AR, x(0,t), b, k == 0); M32(s, AI, x(1,t), b, k == 0)
        M32(s, AR, x(1,t), b+4, False); M32(s, AI, x(0,t), b+8, False)
    stamp(s, 5)
    cmul_pass(s, "t3", +1)
    for t in range(2):
        M32(s, AR, xo(0,t), FR+4*t, t == 0); M32(s, AI, xo(1,t), FR+4*t, t == 0)
        M32(s, AR, xo(1,t), FI+4*t, False); M32(s, AI, xo(0,t), FN+4*t, False)
    s(f"s_sub_u32 s{sT0}, s{sW}, 4\ns_mul_i32 s{sT0}, s{sT0}, 5120\ns_add_u32 s{sT0}, s{sT0}, {L_BNC}")
    s(f"v_and_b32 v6, 31, v{vL}\nv_mul_u32_u24 v6, 80, v6\nv_lshrrev_b32 v7, 5, v{vL}\nv_lshl_add_u32 v6, v7, 3, v6\nv_add_u32 v6, s{sT0}, v6")
    s(f"v_lshrrev_b32 v7, 2, v{vL}\nv_mul_u32_u24 v8, 80, v7\nv_and_b32 v9, 3, v{vL}\nv_lshl_add_u32 v8, v9, 4, v8\nv_add_u32 v8, s{sT0}, v8")
    s(f"v_lshlrev_b32 v7, 7, v7\nv_lshl_add_u32 v7, v9, 4, v7")
    for part, A0 in ((0, AR), (1, AI)):
        for g in range(4):
            a = A0 + 4*g; o = 224 + 2 * (g & 1) + 4 * part
            s(f"v_cvt_pk_bf16_f32 v{o}, v{a}, v{a+1}\nv_cvt_pk_bf16_f32 v{o+1}, v{a+2}, v{a+3}")
            s(f"ds_write_b64 v6, v[{o}:{o+1}] offset:{part*2560 + 16*g}", tag="ow")
    s.wait_ds("ow")
    for part in range(2):
        for i in range(2):
            r = XO + 8*part + 4*i
            s(f"ds_read_b128 v[{r}:{r+3}], v8 offset:{part*2560 + i*16*80}", tag=f"or{part}{i}")
    for part, so, sr in ((0, 50, sWK), (1, 51, sWSI)):
        for i in range(2):
            r = XO + 8*part + 4*i
            s.wait_ds(f"or{part}{i}")
            s(f"buffer_store_dwordx4 v[{r}:{r+3}], v7, s[{sr}:{sr+3}], s{so} offen offset:{i*16*128} sc1")
    stamp(s, 6)
    s("s_waitcnt vmcnt(0)")
    s(f"v_mov_b32 v5, 3\nds_write_b32 v15, v5\ns_cmp_eq_u32 s52, 1\ns_cbranch_scc1 K2_COLX")
    s(f"s_mov_b32 s{sT1}, 0\nK2_EX3:\nds_read_b32 v6, v16\ns_add_u32 s{sT1}, s{sT1}, 1\ns_waitcnt lgkmcnt(0)")
    s(f"v_readfirstlane_b32 s{sT2}, v6\ns_cmp_ge_u32 s{sT1}, 1000000\ns_cbranch_scc1 K2_EXD3\ns_cmp_lt_u32 s{sT2}, 3\ns_cbranch_scc1 K2_EX3\nK2_EXD3:")
    s(f"s_and_b32 s{sT0}, s44, 7\ns_lshl_b32 s{sT0}, s{sT0}, 7\ns_add_u32 s{sT0}, s{sT0}, {WS_FLAG}")
    s(f"v_mov_b32 v5, 1\nv_lshlrev_b32 v6, 10, v{vL}\ns_mov_b32 exec_hi, 0")
    s(f"buffer_atomic_add v5, v6, s[{sWS}:{sWS+3}], s{sT0} offen")
    s("s_mov_b64 exec, -1\nK2_COLX:")
    stamp_out(s, 8)
    s("s_endpgm")
    return s

def kernel(name="k2_kernel"):
    h = head()
    h(f"s_cmp_ge_u32 s{sW}, 4\ns_cbranch_scc1 K2_COL")
    g = Stream(); g.extend(h); g.extend(gemm_path())
    lines = finish(g)
    c = Stream(); c("K2_COL:"); c.extend(col_path())
    lines += finish(c)
    lines += ["K2_END:", "s_endpgm"]
    return f".globl {name}\n.p2align 8\n.type {name},@function\n{name}:\n" + "\n".join(lines) + "\n"
```

```python
NAME = "parallel_sum__spectral_gfnet__glu_gated_bilinear__prompt"
S, D, F = 2048, 640, 1728

WS_STAT = 0x0
WS_CPART = 0x10000
WS_FLAG = 0x40000
FL_ZD = 0
FL_WD = 32768
FL_H = 40960
FL_AT = 49152
FL_WT = 50176
WS_H = 0x100000
WS_AT = 0x900000
WS_WT = 0xC00000
WS_WB = 0xF00000
WS_ZT = 0x1300000
WS_SIZE = 0x1600000

INV640 = "0x3acccccd"

def f2h(x):
    import struct
    return hex(struct.unpack("<I", struct.pack("<f", x))[0])

def srd(s, dst, lo, nbytes):
    s(f"s_mov_b32 s{dst}, s{lo}\ns_and_b32 s{dst+1}, s{lo+1}, 0xffff\ns_mov_b32 s{dst+2}, {nbytes}\ns_mov_b32 s{dst+3}, 0x20000")

def descriptor(name, vgpr=256, sgpr=102):
    return f""".p2align 6
.amdhsa_kernel {name}
  .amdhsa_next_free_vgpr {vgpr}
  .amdhsa_next_free_sgpr {sgpr}
  .amdhsa_accum_offset {min(256, (vgpr + 3) // 4 * 4)}
  .amdhsa_group_segment_fixed_size 0
  .amdhsa_kernarg_size 80
  .amdhsa_user_sgpr_count 2
  .amdhsa_user_sgpr_kernarg_segment_ptr 1
  .amdhsa_system_sgpr_workgroup_id_x 1
  .amdhsa_float_denorm_mode_32 3
.end_amdhsa_kernel
"""

def arrive_ops(s, srd_ws, lane_reg, base, shard, nrep, rep_shift, off_reg, tmp_s, tmp_v, counted=True):
    if shard is None: s(f"s_add_u32 s{tmp_s}, s{off_reg}, {WS_FLAG + base}")
    else: s(f"s_lshl_b32 s{tmp_s}, s{shard}, 7\ns_add_u32 s{tmp_s}, s{tmp_s}, s{off_reg}\ns_add_u32 s{tmp_s}, s{tmp_s}, {WS_FLAG + base}")
    s(f"v_mov_b32 v{tmp_v}, 1\nv_lshlrev_b32 v{tmp_v+1}, {rep_shift}, v{lane_reg}")
    s(f"s_mov_b64 exec, {hex((1 << nrep) - 1)}")
    t = f"buffer_atomic_add v{tmp_v}, v{tmp_v+1}, s[{srd_ws}:{srd_ws+3}], s{tmp_s} offen"
    if counted: s(t)
    else: s.opt(t)
    s("s_mov_b64 exec, -1")
```

```python
from emit import *
from common import *

SEQ = [0, 5, 1, 6, 2, 7, 3, 8, 4, 9]

sX, sWG, sWU, sWS, sWD, sWR, sWI, sDBG = 8, 12, 16, 20, 24, 28, 32, 36
sW, sMI, sNI, sWM, sWN = 40, 41, 42, 43, 44
sAI = 45
sALDS, sBLDS, sT0, sT1, sT2, sT3 = 49, 50, 52, 53, 54, 55
sBK = 51
sGW = 76
sMASK = 78
vL = 1
vA0, vA1, vA0h, vA1h, vB0, vB1, vGA0, vGA1, vGB = 10, 11, 12, 13, 14, 15, 16, 17, 18
SET = [20, 52]
ACC = 128
LDS_B = 98304
LDS_ST = 147456
LDS_COL = LDS_ST + 2048
LDS_CP = LDS_ST + 4096
LDS_BYTES = 163840
LDS_SCR = LDS_CP

STAMPS = False
OPT = {}
WS_STAMP = 0x1590000
def stamp(s, i):
    if STAMPS: s(f"s_memrealtime s[{84+2*i}:{85+2*i}]")
def stamp_out(s, n):
    if not STAMPS: return
    s("s_waitcnt vmcnt(0)"); stamp(s, n - 1); s("s_waitcnt lgkmcnt(0)")
    s(f"s_lshl_b32 s{sT1}, s2, 3\ns_add_u32 s{sT1}, s{sT1}, s{sW}\ns_lshl_b32 s{sT1}, s{sT1}, 5\ns_add_u32 s{sT1}, s{sT1}, {WS_STAMP}")
    for i in range(n): s(f"v_mov_b32 v{20+i}, s{84+2*i}")
    s("s_mov_b64 exec, 1")
    s(f"buffer_store_dwordx4 v[20:23], off, s[{sWS}:{sWS+3}], s{sT1}")
    s(f"buffer_store_dwordx4 v[24:27], off, s[{sWS}:{sWS+3}], s{sT1} offset:16")

def head():
    s = Stream()
    if STAMPS: s("s_memrealtime s[84:85]")
    s("s_cmp_ge_u32 s2, 256\ns_cbranch_scc1 K_END")
    s("s_load_dwordx4 s[56:59], s[0:1], 0\ns_load_dwordx2 s[60:61], s[0:1], 16\ns_load_dwordx4 s[64:67], s[0:1], 32")
    s("s_load_dwordx2 s[68:69], s[0:1], 48\ns_load_dwordx4 s[72:75], s[0:1], 64\ns_load_dwordx2 s[82:83], s[0:1], 56")
    s(f"v_and_b32 v{vL}, 63, v0\nv_lshrrev_b32 v2, 6, v0")
    s("s_and_b32 s3, s2, 7\ns_lshr_b32 s4, s2, 3")
    s(f"v_readfirstlane_b32 s{sW}, v2")
    s(f"s_and_b32 s5, s3, 1\ns_lshl_b32 s5, s5, 2\ns_and_b32 s6, s4, 3\ns_add_u32 s{sMI}, s5, s6")
    s(f"s_lshr_b32 s5, s3, 1\ns_lshl_b32 s5, s5, 3\ns_lshr_b32 s6, s4, 2\ns_add_u32 s{sNI}, s5, s6")
    s(f"s_lshr_b32 s{sWM}, s{sW}, 1\ns_and_b32 s{sWN}, s{sW}, 1")
    s(f"s_lshl_b32 s{sALDS}, s{sW}, 12")
    s(f"s_lshl_b32 s{sBLDS}, s{sW}, 10\ns_add_u32 s{sBLDS}, s{sBLDS}, {LDS_B}")
    s("s_waitcnt lgkmcnt(0)")
    srd(s, sX, 56, S * D * 2)
    srd(s, sWR, 58, S * 321 * 2)
    srd(s, sWI, 60, S * 321 * 2)
    srd(s, sWG, 64, D * F * 2)
    srd(s, sWU, 66, D * F * 2)
    srd(s, sWD, 68, F * D * 2)
    srd(s, sDBG, 72, 256)
    srd(s, sWS, 74, WS_SIZE)
    return s

def lds_addr_setup(dft):
    s = Stream()
    s(f"v_and_b32 v2, 15, v{vL}\nv_lshrrev_b32 v3, 4, v{vL}")
    s(f"v_lshrrev_b32 v4, 1, v2\nv_xor_b32 v4, v4, v3\nv_lshlrev_b32 v4, 4, v4")
    s(f"s_lshl_b32 s{sT0}, s{sWM}, 13")
    s(f"v_lshl_add_u32 v4, v2, 7, v4\nv_add_u32 v{vA0}, s{sT0}, v4\nv_xor_b32 v{vA1}, 64, v{vA0}")
    s(f"v_add_u32 v{vA0h}, 0x10000, v{vA0}\nv_add_u32 v{vA1h}, 0x10000, v{vA1}")
    if not dft:
        s(f"v_lshrrev_b32 v4, 2, v2\nv_lshl_add_u32 v4, v3, 3, v4")
        s(f"v_bfe_u32 v5, v{vL}, 3, 1\nv_and_b32 v6, 1, v3\nv_lshl_or_b32 v5, v6, 1, v5")
        s(f"s_lshl_b32 s{sT0}, s{sWN}, 1\nv_xor_b32 v5, s{sT0}, v5")
        s(f"v_lshlrev_b32 v5, 5, v5\nv_lshl_add_u32 v4, v4, 7, v5")
        s(f"v_and_b32 v6, 3, v2\nv_lshl_add_u32 v4, v6, 3, v4")
        s(f"v_add_u32 v{vB0}, {LDS_B}, v4\nv_xor_b32 v{vB1}, 32, v{vB0}")
    else:
        s(f"s_lshl_b32 s{sT0}, s{sWN}, 11\ns_add_u32 s{sT0}, s{sT0}, {LDS_B}")
        s(f"v_lshlrev_b32 v4, 4, v{vL}\nv_add_u32 v{vB0}, s{sT0}, v4")
    return s

def dma_addr_setup(dft):
    s = Stream()
    s(f"v_and_b32 v2, 7, v{vL}\nv_lshrrev_b32 v3, 4, v{vL}\nv_xor_b32 v2, v2, v3\nv_lshlrev_b32 v2, 4, v2")
    if not dft:
        s(f"v_lshrrev_b32 v4, 3, v{vL}\nv_mul_u32_u24 v4, 1280, v4\nv_add_u32 v{vGA0}, v4, v2")
        s(f"s_lshl_b32 s{sT0}, s{sMI}, 8\ns_lshl_b32 s{sT1}, s{sW}, 5\ns_add_u32 s{sT0}, s{sT0}, s{sT1}\ns_mul_i32 s{sAI}, s{sT0}, 1280")
        for i in range(1, 4): s(f"s_add_u32 s{sAI+i}, s{sAI}, {8*i*1280}")
        s(f"v_bfe_u32 v4, v{vL}, 4, 1\ns_and_b32 s{sT0}, s{sW}, 1\ns_lshl_b32 s{sT0}, s{sT0}, 1\nv_or_b32 v4, s{sT0}, v4")
        s(f"v_lshlrev_b32 v4, 1, v4\nv_and_b32 v5, 7, v{vL}\nv_xor_b32 v4, v4, v5\nv_lshlrev_b32 v4, 4, v4")
        s(f"v_lshrrev_b32 v5, 3, v{vL}\ns_lshl_b32 s{sT0}, s{sW}, 3\nv_add_u32 v5, s{sT0}, v5\nv_mul_u32_u24 v5, 3456, v5")
        s(f"s_lshl_b32 s{sT0}, s{sNI}, 7\nv_add3_u32 v{vGB}, v5, v4, s{sT0}")
    else:
        s(f"v_bfe_u32 v4, v{vL}, 3, 2\nv_lshlrev_b32 v4, 6, v4\nv_lshrrev_b32 v5, 5, v{vL}\nv_add_u32 v4, v4, v5")
        s(f"v_mul_u32_u24 v4, 1280, v4\nv_add_u32 v{vGA0}, v4, v2")
        s(f"s_and_b32 s{sT0}, s{sMI}, 1\ns_lshl_b32 s{sT0}, s{sT0}, 5")
        s(f"s_bfe_u32 s{sT1}, s{sMI}, 0x10001\ns_lshl_b32 s{sT1}, s{sT1}, 8\ns_add_u32 s{sT0}, s{sT0}, s{sT1}")
        s(f"s_lshr_b32 s{sT1}, s{sMI}, 2\ns_lshl_b32 s{sT1}, s{sT1}, 10\ns_add_u32 s{sT0}, s{sT0}, s{sT1}")
        s(f"s_lshl_b32 s{sT1}, s{sWM}, 3\ns_add_u32 s{sT0}, s{sT0}, s{sT1}\ns_lshl_b32 s{sT1}, s{sWN}, 2\ns_add_u32 s{sT0}, s{sT0}, s{sT1}")
        s(f"s_mul_i32 s{sAI}, s{sT0}, 1280")
        for i in range(1, 4): s(f"s_add_u32 s{sAI+i}, s{sAI}, {(512*(i>>1) + 2*(i&1))*1280}")
    s(f"v_xor_b32 v{vGA1}, 64, v{vGA0}")
    return s

def dma_stage(b, dft):
    kb = SEQ[b]; sg = b % 3
    groups = []
    for i in range(4):
        g = Stream()
        g(f"s_add_u32 m0, s{sALDS}, {sg*32768 + i*1024}\ns_add_u32 s{sT0}, s{sAI+i}, {kb*128}")
        g(f"buffer_load_dwordx4 v{vGA0 + (i&1)}, s[{sX}:{sX+3}], s{sT0} offen lds", tag=f"stage{b}")
        u = Stream(); u.group(g); groups.append(u)
    if not dft:
        for mat, srdn in ((0, sWG), (1, sWU)):
            g = Stream()
            g(f"s_add_u32 m0, s{sBLDS}, {sg*16384 + mat*8192}\ns_mov_b32 s{sT0}, {kb*64*3456}")
            g(f"buffer_load_dwordx4 v{vGB}, s[{srdn}:{srdn+3}], s{sT0} offen lds", tag=f"stage{b}")
            u = Stream(); u.group(g); groups.append(u)
    return groups

def frag_reads(u, dft):
    b, ks = u >> 1, u & 1
    sg = b % 3; st = SET[u & 1]
    s = Stream()
    va = (vA0, vA1)[ks] if sg < 2 else (vA0h, vA1h)[ks]
    aoff = (sg % 2) * 32768 if sg < 2 else 0
    A = [f"ds_read_b128 v[{st+4*mt}:{st+4*mt+3}], v{va} offset:{aoff + mt*2048}" for mt in range(4)]
    B = []
    if not dft:
        for mat in range(2):
            for a in range(2):
                r = st + 16 + 4 * (2 * mat + a)
                for jh in range(2):
                    B.append(f"ds_read_b64_tr_b16 v[{r+2*jh}:{r+2*jh+1}], v{vB0 + a} offset:{sg*16384 + mat*8192 + ks*4096 + jh*512}")
    else:
        buf = (b >> 1) & 1
        for nt in range(4):
            part, gk = nt >> 1, nt & 1
            r = st + 16 + 4 * nt
            B.append(f"ds_read_b128 v[{r}:{r+3}], v{vB0} offset:{buf*16384 + ks*8192 + part*4096 + gk*1024}")
    order = []
    if not dft:
        order = [A[0], B[0], B[1], A[1], B[2], B[3], A[2], B[4], B[5], A[3], B[6], B[7]]
    else:
        order = [A[0], B[0], A[1], B[1], A[2], B[2], A[3], B[3]]
    for t in order: s(t, tag=f"rd{u}")
    return s

def mfmas(u, dft):
    first = (u == 0) or (dft and u == 2)
    st = SET[u & 1]
    s = Stream()
    hi = dft and SEQ[u >> 1] >= 5
    pairs = sorted([(mt, nt) for mt in range(4) for nt in range(4)], key=lambda p: (max(p), p[0] + p[1]))
    for mt, nt in pairs:
        if not dft:
            acc = ACC + 32 * (nt >> 1) + 4 * (2 * mt + (nt & 1))
            s(f"v_mfma_f32_16x16x32_bf16 v[{acc}:{acc+3}], v[{st+16+4*nt}:{st+19+4*nt}], v[{st+4*mt}:{st+4*mt+3}], {'0' if first else f'v[{acc}:{acc+3}]'}")
        else:
            acc = ACC + (64 if hi else 0) + 4 * (4 * mt + nt)
            s(f"v_mfma_f32_16x16x32_bf16 v[{acc}:{acc+3}], v[{st+4*mt}:{st+4*mt+3}], v[{st+16+4*nt}:{st+19+4*nt}], {'0' if first else f'v[{acc}:{acc+3}]'}")
    return s

def stats_loads(dft):
    s = Stream()
    s(f"s_lshl_b32 s{sT1}, s{sMI}, 8\ns_lshl_b32 s{sT2}, s{sNI}, 3\ns_add_u32 s{sT1}, s{sT1}, s{sT2}\ns_add_u32 s{sT1}, s{sT1}, s{sW}")
    s(f"s_mul_i32 s{sT2}, s{sT1}, 1280\ns_lshl_b32 s77, s{sT1}, 3")
    s(f"v_lshlrev_b32 v2, 4, v{vL}\nv_lshlrev_b32 v3, 2, v{vL}")
    s(f"buffer_load_dwordx4 v[116:119], v2, s[{sX}:{sX+3}], s{sT2} offen", tag="rowld")
    s(f"buffer_load_dword v120, v3, s[{sX}:{sX+3}], s{sT2} offen offset:1024", tag="rowld")
    if not dft:
        s(f"v_lshrrev_b32 v4, 5, v{vL}\nv_mul_u32_u24 v4, 3456, v4\nv_and_b32 v5, 31, v{vL}\nv_lshl_add_u32 v4, v5, 2, v4")
        s(f"s_mul_i32 s{sT2}, s{sMI}, 80\ns_mul_i32 s{sT3}, s{sW}, 10\ns_add_u32 s{sT2}, s{sT2}, s{sT3}\ns_mul_i32 s{sT2}, s{sT2}, 3456")
        s(f"s_lshl_b32 s{sT3}, s{sNI}, 7\ns_add_u32 s{sT2}, s{sT2}, s{sT3}")
        for i in range(5):
            s(f"buffer_load_dword v{92+i}, v4, s[{sWG}:{sWG+3}], s{sT2} offen", tag="colld")
            s(f"buffer_load_dword v{97+i}, v4, s[{sWU}:{sWU+3}], s{sT2} offen", tag="colld")
            if i < 4: s(f"s_add_u32 s{sT2}, s{sT2}, {2*3456}")
    return s

def row_stats():
    s = Stream()
    s.wait_vm("rowld")
    s("v_mov_b32 v122, 0\nv_mov_b32 v123, 0")
    for r in range(116, 121):
        s(f"v_lshlrev_b32 v2, 16, v{r}\nv_and_b32 v3, 0xffff0000, v{r}")
        s("v_add_f32 v122, v122, v2\nv_fmac_f32 v123, v2, v2\nv_add_f32 v122, v122, v3\nv_fmac_f32 v123, v3, v3")
    for ctl in ("row_shr:1 row_mask:0xf bank_mask:0xf bound_ctrl:0", "row_shr:2 row_mask:0xf bank_mask:0xf bound_ctrl:0",
                "row_shr:4 row_mask:0xf bank_mask:0xf bound_ctrl:0", "row_shr:8 row_mask:0xf bank_mask:0xf bound_ctrl:0",
                "row_bcast:15 row_mask:0xa bank_mask:0xf", "row_bcast:31 row_mask:0xc bank_mask:0xf"):
        s(f"v_add_f32_dpp v122, v122, v122 {ctl}\nv_add_f32_dpp v123, v123, v123 {ctl}")
    s(f"v_mul_f32 v122, {INV640}, v122\nv_mul_f32 v123, {INV640}, v123")
    s("v_fma_f32 v123, -v122, v122, v123\nv_max_f32 v123, 0, v123")
    s("v_cvt_pk_bf16_f32 v122, v122, v123\nv_and_b32 v123, 0xffff0000, v122\nv_lshlrev_b32 v122, 16, v122")
    s("v_add_f32 v123, 0x3727c5ac, v123\nv_cvt_pk_bf16_f32 v123, v123, v123\nv_lshlrev_b32 v123, 16, v123")
    s("v_sqrt_f32 v123, v123\nv_cvt_pk_bf16_f32 v123, v123, v123\nv_lshlrev_b32 v123, 16, v123\nv_rcp_f32 v123, v123")
    g = Stream()
    g(f"s_add_u32 s77, s77, {WS_STAT}\ns_lshl_b64 exec, 1, 63")
    g(f"buffer_store_dwordx2 v[122:123], off, s[{sWS}:{sWS+3}], s77 sc1", tag="pub")
    g("s_mov_b64 exec, -1")
    s.group(g)
    return s

def col_stats():
    s = Stream()
    if True:
        s.wait_vm("colld")
        s("v_mov_b32 v2, 0\nv_mov_b32 v3, 0\nv_mov_b32 v4, 0\nv_mov_b32 v5, 0")
        for i in range(5):
            s(f"v_lshlrev_b32 v6, 16, v{92+i}\nv_and_b32 v7, 0xffff0000, v{92+i}\nv_add_f32 v2, v2, v6\nv_add_f32 v3, v3, v7")
            s(f"v_lshlrev_b32 v6, 16, v{97+i}\nv_and_b32 v7, 0xffff0000, v{97+i}\nv_add_f32 v4, v4, v6\nv_add_f32 v5, v5, v7")
        s("v_permlane32_swap_b32 v2, v4\nv_permlane32_swap_b32 v3, v5\nv_add_f32 v2, v2, v4\nv_add_f32 v3, v3, v5")
        s(f"s_lshl_b32 s{sT1}, s{sW}, 9\ns_add_u32 s{sT1}, s{sT1}, {LDS_CP}\nv_lshlrev_b32 v6, 3, v{vL}\nv_add_u32 v6, s{sT1}, v6")
        s("ds_write_b64 v6, v[2:3]", tag="cpw")
    return s

def colsum_publish():
    s = Stream()
    s(f"v_and_b32 v84, 15, v{vL}\nv_lshrrev_b32 v85, 4, v{vL}\ns_lshl_b32 s{sT1}, s{sW}, 6")
    s(f"v_lshlrev_b32 v86, 9, v85\nv_lshl_add_u32 v86, v84, 2, v86\ns_add_u32 s{sT2}, s{sT1}, {LDS_CP}\nv_add_u32 v86, s{sT2}, v86")
    s("ds_read_b32 v87, v86", tag="cpr"); s("ds_read_b32 v88, v86 offset:2048", tag="cpr")
    s(f"s_lshl_b32 s{sT2}, s{sNI}, 12\ns_lshl_b32 s{sT3}, s{sMI}, 9\ns_add_u32 s{sT2}, s{sT2}, s{sT3}\ns_add_u32 s{sT2}, s{sT2}, s{sT1}\ns_add_u32 s80, s{sT2}, {WS_CPART}")
    s(f"v_lshlrev_b32 v89, 2, v84")
    s.wait_ds("cpr")
    s("v_add_f32 v87, v87, v88\nv_mov_b32 v88, v87\nv_permlane16_swap_b32 v88, v87\nv_add_f32 v87, v87, v88")
    s("v_mov_b32 v88, v87\nv_permlane32_swap_b32 v88, v87\nv_add_f32 v87, v87, v88")
    g = Stream()
    g("s_mov_b64 exec, 0xffff")
    g(f"buffer_store_dword v87, v89, s[{sWS}:{sWS+3}], s80 offen sc1", tag="pub")
    g("s_mov_b64 exec, -1")
    s.group(g)
    return s

sOOB0 = 68
def leader_setup():
    s = Stream()
    s(f"s_cmp_eq_u32 s{sW}, 0\ns_cselect_b32 s{sOOB0}, 0, 0x40000000")
    return s

def arrive():
    g = Stream()
    g(f"s_and_b32 s{sT1}, s2, 7\ns_lshl_b32 s{sT1}, s{sT1}, 5\ns_add_u32 s{sT1}, s{sT1}, s{sOOB0}\nv_mov_b32 v126, 1\ns_mov_b64 exec, 1")
    g(f"buffer_atomic_add v126, off, s[{sDBG}:{sDBG+3}], s{sT1}")
    g("s_mov_b64 exec, -1")
    s = Stream(); s.group(g)
    return s

def poll_issue():
    s = Stream()
    s(f"v_and_b32 v116, 7, v{vL}\nv_lshlrev_b32 v116, 5, v116")
    s(f"buffer_load_dword v117, v116, s[{sDBG}:{sDBG+3}], s{sOOB0} offen sc1", tag="poll")
    return s

def poll_check():
    g = Stream()
    g.wait_vm("poll")
    g(f"s_cmp_lg_u32 s{sW}, 0\ns_cbranch_scc1 K1_SPUN_\\V\nv_cmp_ne_u32 vcc, 32, v117\ns_cbranch_vccnz K1_SPIN_\\V\nK1_SPUN_\\V:")
    s = Stream(); s.group(g)
    return s

def spin_block():
    s = Stream()
    s(f"K1_SPIN_\\V:\ns_mov_b32 s{sT1}, 0\nK1_SPINL_\\V:\ns_sleep 8")
    s.append(Op(f"buffer_load_dword v117, v116, s[{sDBG}:{sDBG+3}], 0 offen sc1", "raw"))
    s(f"s_add_u32 s{sT1}, s{sT1}, 1"); s.append(Op("s_waitcnt vmcnt(0)", "raw"))
    s(f"v_cmp_ne_u32 vcc, 32, v117\ns_cmp_ge_u32 s{sT1}, 100000\ns_cbranch_scc1 K1_SPUN_\\V\ns_cbranch_vccz K1_SPUN_\\V\ns_branch K1_SPINL_\\V")
    return s

def stats_fetch(dft):
    s = Stream()
    if not dft:
        s(f"v_and_b32 v116, 31, v{vL}\ns_lshl_b32 s{sT1}, s{sW}, 5\nv_add_u32 v116, s{sT1}, v116")
        s(f"s_lshl_b32 s{sT2}, s{sMI}, 11\nv_lshlrev_b32 v118, 3, v116\ns_add_u32 s{sT2}, s{sT2}, {WS_STAT}")
        s(f"buffer_load_dwordx2 v[120:121], v118, s[{sWS}:{sWS+3}], s{sT2} offen sc1", tag="stld")
        s(f"v_and_b32 v119, 15, v{vL}\nv_lshrrev_b32 v122, 4, v{vL}\nv_lshlrev_b32 v122, 9, v122\nv_lshl_add_u32 v122, v119, 2, v122")
        s(f"s_lshl_b32 s{sT1}, s{sW}, 6\ns_lshl_b32 s{sT2}, s{sNI}, 12\ns_add_u32 s{sT2}, s{sT2}, s{sT1}\ns_add_u32 s{sT2}, s{sT2}, {WS_CPART}")
        s(f"buffer_load_dword v123, v122, s[{sWS}:{sWS+3}], s{sT2} offen sc1", tag="stld")
        s(f"buffer_load_dword v124, v122, s[{sWS}:{sWS+3}], s{sT2} offen offset:2048 sc1", tag="stld")
    else:
        s(f"v_bfe_u32 v116, v{vL}, 4, 1\nv_lshlrev_b32 v116, 9, v116\nv_and_b32 v118, 3, v{vL}\nv_lshl_add_u32 v116, v118, 6, v116")
        s(f"v_bfe_u32 v118, v{vL}, 2, 2\nv_add_u32 v116, v116, v118")
        s(f"s_mul_hi_u32 s{sT1}, s{sAI}, 0x333334")
        s(f"s_lshl_b32 s{sT1}, s{sT1}, 3\ns_add_u32 s{sT1}, s{sT1}, {WS_STAT}\nv_lshlrev_b32 v118, 3, v116")
        s(f"buffer_load_dwordx2 v[120:121], v118, s[{sWS}:{sWS+3}], s{sT1} offen sc1", tag="stld")
    return s

def stats_store(dft):
    s = Stream()
    s.wait_vm("stld")
    if not dft:
        s(f"v_mul_f32 v121, v121, v121\nv_lshlrev_b32 v118, 3, v116\nv_add_u32 v118, {LDS_ST}, v118")
        s("ds_write_b64 v118, v[120:121]", tag="stw")
        s("v_add_f32 v123, v123, v124\nv_mov_b32 v124, v123\nv_permlane16_swap_b32 v124, v123\nv_add_f32 v123, v123, v124")
        s("v_mov_b32 v124, v123\nv_permlane32_swap_b32 v124, v123\nv_add_f32 v123, v123, v124")
        s(f"s_lshl_b32 s{sT1}, s{sW}, 6\ns_add_u32 s{sT1}, s{sT1}, {LDS_COL}\nv_lshl_add_u32 v119, v119, 2, s{sT1}")
        s("ds_write_b32 v119, v123", tag="stw")
    else:
        s(f"v_and_b32 v118, 31, v{vL}\ns_lshl_b32 s{sT1}, s{sW}, 7\ns_add_u32 s{sT1}, s{sT1}, {LDS_ST}\nv_lshl_add_u32 v118, v118, 2, s{sT1}")
        s("ds_write_b32 v118, v121", tag="stw")
    return s

def zero_flags():
    s = Stream()
    g = Stream()
    g(f"s_lshl_b32 s{sT2}, s2, 7\ns_add_u32 s{sT1}, s{sOOB0}, s{sT2}\ns_add_u32 s{sT1}, s{sT1}, {WS_FLAG}\nv_mov_b32 v126, 0\nv_lshlrev_b32 v127, 15, v{vL}\ns_mov_b64 exec, 3")
    g(f"buffer_store_dword v126, v127, s[{sWS}:{sWS+3}], s{sT1} offen sc1", tag="pub")
    g("s_mov_b64 exec, -1")
    s.group(g)
    s(f"s_cmp_lt_u32 s2, 4\ns_cselect_b32 s{sT1}, 0, 0x40000000\ns_or_b32 s{sT1}, s{sT1}, s{sOOB0}\ns_lshl_b32 s{sT2}, s2, 10\ns_add_u32 s{sT1}, s{sT1}, s{sT2}\ns_add_u32 s{sT1}, s{sT1}, {WS_ZT}")
    s(f"v_mov_b32 v124, 0\nv_mov_b32 v125, 0\nv_mov_b32 v126, 0\nv_mov_b32 v127, 0\nv_lshlrev_b32 v121, 4, v{vL}")
    s(f"buffer_store_dwordx4 v[124:127], v121, s[{sWS}:{sWS+3}], s{sT1} offen sc1", tag="pub")
    return s

def arrive_wd():
    g = Stream()
    arrive_ops(g, sWS, vL, FL_WD, sMI, 8, 10, sOOB0, sT1, 126)
    s = Stream(); s.group(g)
    return s

def epilogue_glu():
    s = Stream()
    s(f"v_and_b32 v2, 15, v{vL}\nv_lshrrev_b32 v3, 4, v{vL}")
    s(f"s_lshl_b32 s{sT1}, s{sWM}, 9\ns_add_u32 s{sT1}, s{sT1}, {LDS_ST}\nv_lshl_add_u32 v4, v2, 3, s{sT1}")
    s(f"s_lshl_b32 s{sT1}, s{sWN}, 7\ns_add_u32 s{sT1}, s{sT1}, {LDS_COL}\nv_lshl_add_u32 v5, v3, 4, s{sT1}")
    for mt in range(4): s(f"ds_read_b64 v[{20+2*mt}:{21+2*mt}], v4 offset:{mt*128}", tag="e1")
    for a in range(2):
        s(f"ds_read_b128 v[{28+4*a}:{31+4*a}], v5 offset:{a*64}", tag="e1")
        s(f"ds_read_b128 v[{36+4*a}:{39+4*a}], v5 offset:{256 + a*64}", tag="e1")
    s(f"s_lshl_b32 s{sT1}, s{sMI}, 4\ns_lshl_b32 s{sT2}, s{sWM}, 2\ns_add_u32 s{sT1}, s{sT1}, s{sT2}\ns_mul_i32 s{sT1}, s{sT1}, 54")
    s(f"s_lshl_b32 s{sT2}, s{sNI}, 1\ns_add_u32 s{sT1}, s{sT1}, s{sT2}\ns_add_u32 s{sT1}, s{sT1}, s{sWN}\ns_lshl_b32 s{sT1}, s{sT1}, 10\ns_add_u32 s{sT1}, s{sT1}, {WS_H}")
    s(f"v_lshlrev_b32 v6, 4, v{vL}")
    s.wait_ds("e1")
    for mt in range(4):
        ms = 20 + 2 * mt
        o = 44 + 4 * (mt & 1) + 8 * 0
        o = 44 + 4 * mt
        for a in range(2):
            G = ACC + 4 * (2 * mt + a); U = G + 32
            for p in range(2):
                g, u = G + 2 * p, U + 2 * p
                cg, cu = 28 + 4 * a + 2 * p, 36 + 4 * a + 2 * p
                s(f"v_pk_fma_f32 v[{g}:{g+1}], v[{ms}:{ms+1}], v[{cg}:{cg+1}], v[{g}:{g+1}] op_sel_hi:[0,1,1] neg_lo:[1,0,0] neg_hi:[1,0,0]")
                s(f"v_pk_fma_f32 v[{u}:{u+1}], v[{ms}:{ms+1}], v[{cu}:{cu+1}], v[{u}:{u+1}] op_sel_hi:[0,1,1] neg_lo:[1,0,0] neg_hi:[1,0,0]")
                s(f"v_pk_mul_f32 v[{g}:{g+1}], v[{g}:{g+1}], v[{ms}:{ms+1}] op_sel:[0,1] op_sel_hi:[1,1]")
                s(f"v_pk_mul_f32 v[{g}:{g+1}], v[{g}:{g+1}], v[{u}:{u+1}]")
                s(f"v_cvt_pk_bf16_f32 v{o + 2*a + p}, v{g}, v{g+1}")
        s(f"buffer_store_dwordx4 v[{o}:{o+3}], v6, s[{sWS}:{sWS+3}], s{sT1} offen sc1")
        if mt < 3: s(f"s_add_u32 s{sT1}, s{sT1}, {54*1024}")
    return s

def epilogue_dft():
    s = Stream()
    s(f"v_and_b32 v2, 15, v{vL}\nv_lshrrev_b32 v3, 4, v{vL}")
    s(f"s_lshl_b32 s{sT1}, s{sWM}, 8\ns_add_u32 s{sT1}, s{sT1}, {LDS_ST}\nv_lshl_add_u32 v4, v3, 4, s{sT1}")
    for mt in range(4): s(f"ds_read_b128 v[{20+4*mt}:{23+4*mt}], v4 offset:{mt*64}", tag="e1")
    s(f"v_and_b32 v5, 1, v{vL}\nv_lshlrev_b32 v5, 31, v5\nv_or_b32 v52, 0x3f800000, v5")
    s(f"s_mul_i32 s{sT1}, s{sW}, 9216\nv_mul_u32_u24 v6, 144, v2\nv_lshl_add_u32 v6, v3, 4, v6\nv_add_u32 v6, s{sT1}, v6")
    s(f"v_lshrrev_b32 v7, 3, v{vL}\nv_and_b32 v8, 7, v{vL}\nv_mul_u32_u24 v9, 144, v7\nv_lshl_add_u32 v9, v8, 4, v9\nv_add_u32 v9, s{sT1}, v9")
    s(f"v_lshlrev_b32 v7, 13, v7\nv_lshl_add_u32 v7, v8, 4, v7")
    s.wait_ds("e1")
    for nt in range(4):
        for P in range(2):
            o = 56 + 4 * ((2 * nt + P) & 3)
            for hh in range(2):
                mt = 2 * P + hh
                lo = ACC + 4 * (4 * mt + nt); hi = lo + 64
                for p in range(2):
                    a, b = lo + 2 * p, hi + 2 * p
                    rs = 20 + 4 * mt + 2 * p; cr = 36 + 4 * mt + 2 * p
                    s(f"v_pk_fma_f32 v[{a}:{a+1}], v[{b}:{b+1}], v[52:53], v[{a}:{a+1}] op_sel_hi:[1,0,1]")
                    s(f"v_pk_mul_f32 v[{a}:{a+1}], v[{a}:{a+1}], v[{rs}:{rs+1}]")
                    s(f"v_cvt_pk_bf16_f32 v{o + 2*hh + p}, v{a}, v{a+1}")
            s(f"ds_write_b128 v6, v[{o}:{o+3}] offset:{nt*16*144 + P*64}", tag="bw")
    s(f"s_sub_u32 s{sT1}, s{sNI}, 27\ns_lshl_b32 s{sT1}, s{sT1}, 1\ns_add_u32 s{sT1}, s{sT1}, s{sWN}\ns_lshl_b32 s{sT1}, s{sT1}, 18")
    s(f"s_and_b32 s{sT2}, s{sMI}, 1\ns_lshl_b32 s{sT2}, s{sT2}, 11\ns_add_u32 s{sT1}, s{sT1}, s{sT2}")
    s(f"s_lshr_b32 s{sT2}, s{sMI}, 2\ns_lshl_b32 s{sT2}, s{sT2}, 10\ns_add_u32 s{sT1}, s{sT1}, s{sT2}")
    s(f"s_bfe_u32 s{sT2}, s{sMI}, 0x10001\ns_lshl_b32 s{sT2}, s{sT2}, 9\ns_add_u32 s{sT1}, s{sT1}, s{sT2}")
    s(f"s_lshl_b32 s{sT2}, s{sWM}, 7\ns_add_u32 s{sT1}, s{sT1}, s{sT2}\ns_add_u32 s{sT1}, s{sT1}, {WS_AT}")
    s.wait_ds("bw")
    for i in range(8):
        r = 60 + 4 * i if i < 8 else 0
        s(f"ds_read_b128 v[{72+4*i}:{75+4*i}], v9 offset:{i*8*144}", tag=f"br{i}")
    for i in range(8):
        nt = i >> 1; part, gk = nt >> 1, nt & 1
        off = (16 * gk + 8 * (i & 1)) * 8192 + part * 4096
        s.wait_ds(f"br{i}")
        s(f"s_add_u32 s{sT2}, s{sT1}, {off}")
        s(f"buffer_store_dwordx4 v[{72+4*i}:{75+4*i}], v7, s[{sWS}:{sWS+3}], s{sT2} offen sc1")
    return s

vROT = 84
vC0, vS0, vC64, vS64 = 98, 99, 100, 101
vFW = 102
vGT = 104
vTMP = 112

def fgen_setup():
    s = Stream()
    s(f"s_sub_u32 s{sT1}, s{sNI}, 27\ns_lshl_b32 s{sT1}, s{sT1}, 6\ns_and_b32 s{sT2}, s{sW}, 3\ns_lshl_b32 s{sT2}, s{sT2}, 4\ns_add_u32 s{sT1}, s{sT1}, s{sT2}")
    s(f"v_and_b32 v2, 15, v{vL}\nv_add_u32 v2, s{sT1}, v2\nv_cvt_f32_u32 v3, v2")
    s(f"v_cmp_eq_u32 s[{sMASK}:{sMASK+1}], 0, v2")
    s(f"s_lshr_b32 s{sT2}, s{sW}, 2\ns_lshl_b32 s{sT2}, s{sT2}, 5\nv_lshrrev_b32 v4, 4, v{vL}\nv_lshl_add_u32 v4, v4, 3, s{sT2}\nv_cvt_f32_u32 v4, v4")
    def angle(dst_c, dst_s, src, neg):
        s(f"v_mul_f32 v5, {INV640}, {src}\nv_floor_f32 v5, v5\nv_fma_f32 v5, v5, s{sT3}, {src}\nv_mul_f32 v5, {INV640}, v5")
        s(f"v_cos_f32 v{dst_c}, v5\nv_sin_f32 v{dst_s}, v5")
        if neg: s(f"v_sub_f32 v{dst_s}, 0, v{dst_s}")
    s(f"s_mov_b32 s{sT3}, {f2h(-640.0)}")
    for j in range(1, 8):
        s(f"v_mul_f32 v6, {float(j) if j in (1,2,4) else f2h(float(j))}, v3")
        angle(vROT + 2*(j-1), vROT + 2*(j-1) + 1, "v6", False)
    s("v_mul_f32 v6, v3, v4"); angle(vC0, vS0, "v6", True)
    s(f"v_mul_f32 v6, {f2h(64.0)}, v3"); angle(vC64, vS64, "v6", False)
    s(f"s_lshr_b32 s{sT1}, s{sW}, 2\ns_lshl_b32 s{sT1}, s{sT1}, 13\ns_and_b32 s{sT2}, s{sW}, 3\ns_lshl_b32 s{sT2}, s{sT2}, 10")
    s(f"s_add_u32 s{sT1}, s{sT1}, s{sT2}\ns_add_u32 s{sT1}, s{sT1}, {LDS_B}\nv_lshlrev_b32 v5, 4, v{vL}\nv_add_u32 v{vFW}, s{sT1}, v5")
    s(f"v_mov_b32 v103, 0xbf803f80")
    return s

def fgen(p):
    s = Stream()
    t = vTMP
    for jj in range(4):
        vals = []
        for j in (2*jj, 2*jj + 1):
            c, sn = t + 2*(j & 1), t + 4 + 2*(j & 1)
            if j == 0:
                vals.append((vC0, vS0)); continue
            cj, sj = vROT + 2*(j-1), vROT + 2*(j-1) + 1
            cc, ss = t + (j & 1), t + 2 + (j & 1)
            s(f"v_mul_f32 v{cc}, v{vC0}, v{cj}\nv_mul_f32 v{ss}, v{vS0}, v{cj}")
            s(f"v_fmac_f32 v{cc}, v{vS0}, v{sj}\nv_fma_f32 v{ss}, -v{vC0}, v{sj}, v{ss}")
            vals.append((cc, ss))
        s(f"v_cvt_pk_bf16_f32 v{vGT+jj}, v{vals[0][0]}, v{vals[1][0]}")
        s(f"v_cvt_pk_bf16_f32 v{vGT+4+jj}, v{vals[0][1]}, v{vals[1][1]}")
        s(f"v_cndmask_b32 v{vGT+4+jj}, v{vGT+4+jj}, v103, s[{sMASK}:{sMASK+1}]")
    buf = p & 1
    s(f"ds_write_b128 v{vFW}, v[{vGT}:{vGT+3}] offset:{buf*16384}", tag=f"fw{p}")
    s(f"ds_write_b128 v{vFW}, v[{vGT+4}:{vGT+7}] offset:{buf*16384 + 4096}", tag=f"fw{p}")
    if p < 4:
        s(f"v_mul_f32 v{t}, v{vC0}, v{vC64}\nv_mul_f32 v{t+1}, v{vS0}, v{vC64}")
        s(f"v_fmac_f32 v{t}, v{vS0}, v{vS64}\nv_fma_f32 v{vS0}, -v{vC0}, v{vS64}, v{t+1}\nv_mov_b32 v{vC0}, v{t}")
    return s

def path(dft, side=None, opts=None):
    V = "D" if dft else "G"
    mode = OPT.get("stats", 1)
    s = Stream()
    s.extend(dma_addr_setup(dft))
    for b in range(2):
        for g in dma_stage(b, dft): s.extend(g)
        if b == 0: s("s_barrier")
    if mode == 2: s.extend(stats_loads(dft))
    s.extend(lds_addr_setup(dft))
    s.extend(leader_setup())
    if dft:
        s.extend(fgen_setup()); s.extend(fgen(0))
    s.wait_ds("all"); s.wait_vm("stage0"); s("s_barrier")
    stamp(s, 1)
    s.extend(frag_reads(0, dft))
    ex = {(b, h): Stream() for b in range(10) for h in "AB"}
    o = OPT.get("sdelay", 1)
    if mode == 1: ex[(o - 1, "B")].extend(stats_loads(dft))
    if mode:
        c = o + OPT.get("sgap", 1) if mode == 1 else 0
        ex[(c, "B")].extend(row_stats())
        if not dft:
            ex[(c, "B")].extend(col_stats())
            ex[(c + 1, "B")].extend(colsum_publish())
        pubwait = c + 3
        ex[(c + 3, "B")].extend(arrive())
        pb = OPT.get("pollb", 7)
        ex[(pb, "A")].extend(poll_issue())
        ex[(pb + 1, "A")].extend(poll_check())
        ex[(pb + 1, "B")].extend(stats_fetch(dft))
    ex[(0, "A")].extend(zero_flags())
    if not dft: ex[(8, "B")].extend(arrive_wd())
    if dft:
        for p in range(1, 5):
            f = fgen(p); h = len(f) // 2
            while f[h].kind == "ds": h -= 1
            ex[(2*p - 2, "B")].extend(f[:h]); ex[(2*p - 1, "A")].extend(f[h:])
    elif side is not None:
        for key, st in side.items():
            if key != "end": ex[key].extend(st)
    pend_dma = dma_stage(2, dft)
    for b in range(10):
        rd = frag_reads(2*b + 1, dft)
        dm = Stream()
        for g in pend_dma: dm.extend(g)
        pend_dma = []
        s.wait_ds(f"rd{2*b}")
        s.extend(merge(mfmas(2*b, dft), [rd, dm, ex[(b, "A")]]))
        s.wait_ds("all")
        if b + 1 <= 9: s.wait_vm(f"stage{b+1}")
        if mode and b == pubwait: s.wait_vm("pub")
        if b == 8 and not dft and side is not None:
            s.wait_vm("gst"); s.wait_opt("wtst")
        s("s_barrier")
        groups = dma_stage(b + 3, dft) if b + 3 <= 9 else []
        half = (len(groups) + 1) // 2
        dm = Stream()
        for g in groups[:half]: dm.extend(g)
        pend_dma = groups[half:]
        rd = frag_reads(2*b + 2, dft) if b < 9 else Stream()
        s.extend(merge(mfmas(2*b + 1, dft), [rd, dm, ex[(b, "B")]]))
    stamp(s, 2)
    if mode:
        s.extend(stats_store(dft)); s.wait_ds("all"); s("s_barrier")
    s.extend(epilogue_dft() if dft else epilogue_glu())
    s("s_branch PHASE2")
    if mode: s.extend(spin_block())
    s = flatten(s)
    for op in s: op.text = op.text.replace("\\V", V)
    return s
```

```python
from emit import *
from common import *
import side

sX, sOUT, sWS, sWK, sDBG, sWSI = 8, 12, 16, 20, 24, 28
sW, sMB, sNB = 40, 70, 71
sMI, sNI = 41, 42
sLEAD = 68
sH, sB = 44, 48
sT0, sT1, sT2, sT3 = 54, 55, 56, 57
vL = 1
RED = 21504
L_T1 = 0
L_T3 = L_T1 + 16384
L_F64 = L_T3 + 16384
L_F32 = L_F64 + 24576
L_FLAG = L_F32 + 6144
L_GEMM = L_FLAG + 128
LDS_BYTES = L_GEMM + 4 * RED
L_EX = L_GEMM
L_BNC = L_EX + 32768
L_WT = L_BNC + 20480

STAMPS = False
OPT = {}
WS_STAMP = 0x1590000
def stamp(s, i):
    if STAMPS: s(f"s_memrealtime s[{84+2*i}:{85+2*i}]")
def stamp_out(s, n, gemm=False):
    if not STAMPS: return
    s("s_waitcnt vmcnt(0)"); stamp(s, n - 1); s("s_waitcnt lgkmcnt(0)")
    s(f"s_lshl_b32 s{sT1}, s2, 3\ns_add_u32 s{sT1}, s{sT1}, s{sW}\ns_lshl_b32 s{sT1}, s{sT1}, 5\ns_add_u32 s{sT1}, s{sT1}, {WS_STAMP}")
    for i in range(n): s(f"v_mov_b32 v{20+i}, s{84+2*i}")
    s("s_mov_b64 exec, 1")
    s(f"buffer_store_dwordx4 v[20:23], off, s[{sWS}:{sWS+3}], s{sT1}")
    s(f"buffer_store_dwordx4 v[24:27], off, s[{sWS}:{sWS+3}], s{sT1} offset:16")
    if OPT.get("dbgout") and gemm:
        s(f"s_cmp_lg_u32 s{sW}, 0\ns_cbranch_scc1 K2_NODBG")
        s("s_load_dwordx2 s[70:71], s[0:1], 64\ns_waitcnt lgkmcnt(0)")
        srd(s, sDBG, 70, 256)
        s(f"s_lshl_b32 s{sT1}, s2, 8\ns_add_u32 s{sT1}, s{sT1}, 0x1590000\ns_mov_b32 s{sT2}, 0x1590000")
        s(f"buffer_load_dwordx4 v[28:31], off, s[{sWS}:{sWS+3}], s{sT1}\nbuffer_load_dwordx4 v[32:35], off, s[{sWS}:{sWS+3}], s{sT1} offset:16")
        s(f"buffer_load_dword v36, off, s[{sWS}:{sWS+3}], s{sT2}\ns_waitcnt vmcnt(0)\nv_subrev_u32 v36, 200, v36")
        for i in range(8):
            s(f"v_sub_u32 v37, v{28+i}, v36\nbuffer_atomic_umax v37, off, s[{sDBG}:{sDBG+3}], 0 offset:{4*i}")
            s(f"v_sub_u32 v38, v{20+i}, v36\nbuffer_atomic_umax v38, off, s[{sDBG}:{sDBG+3}], 0 offset:{32+4*i}")
            s("s_waitcnt vmcnt(0)")
        s("K2_NODBG:")

def entry():
    s = Stream()
    s("PHASE2:\ns_barrier")
    s("s_and_b32 s3, s2, 7\ns_lshr_b32 s4, s2, 3")
    s(f"s_and_b32 s5, s3, 3\ns_lshl_b32 s5, s5, 3\ns_and_b32 s6, s4, 7\ns_add_u32 s{sMB}, s5, s6")
    s(f"s_lshr_b32 s5, s3, 2\ns_lshl_b32 s5, s5, 2\ns_lshr_b32 s6, s4, 3\ns_add_u32 s{sNB}, s5, s6")
    s(f"v_lshlrev_b32 v2, 2, v{vL}\nv_and_b32 v2, 31, v2\nv_add_u32 v2, {L_FLAG}, v2\nv_mov_b32 v3, 0\nds_write_b32 v2, v3")
    for d in (sWS, sWSI):
        for q in range(4): s(f"s_mov_b32 s{d+q}, s{20+q}")
    srd(s, sOUT, 82, S * D * 2)
    s.extend(tables())
    s("s_waitcnt vmcnt(0) lgkmcnt(0)\ns_barrier")
    stamp(s, 3)
    g = Stream()
    g(f"s_cmp_ge_u32 s{sNI}, 27\ns_cbranch_scc1 P2_ARRD")
    arrive_ops(g, sWS, vL, FL_H, sMI, 8, 10, sLEAD, sT1, 5, counted=False)
    g("s_branch P2_ARRX\nP2_ARRD:")
    arrive_ops(g, sWS, vL, FL_AT, None, 8, 7, sLEAD, sT1, 5, counted=False)
    g("P2_ARRX:")
    s.group(g)
    return s

def spin_global(s, name, voff, vexp, vval, soff, sleep=3):
    s(f"s_mov_b32 s{sT1}, 0\n{name}:")
    s.append(Op(f"buffer_load_dword v{vval}, v{voff}, s[{sWS}:{sWS+3}], s{soff} offen sc1", "raw"))
    s(f"s_add_u32 s{sT1}, s{sT1}, 1"); s.append(Op("s_waitcnt vmcnt(0)", "raw"))
    s(f"v_cmp_ne_u32 vcc, v{vexp}, v{vval}\ns_cmp_ge_u32 s{sT1}, 100000\ns_cbranch_scc1 {name}D\ns_cbranch_vccz {name}D\ns_sleep {sleep}\ns_branch {name}\n{name}D:")

def lds_signal(s, word, tmp=5):
    s(f"v_mov_b32 v{tmp}, {L_FLAG + 4*word}\nv_mov_b32 v{tmp+1}, 1\nds_write_b32 v{tmp}, v{tmp+1}")

def lds_wait(s, name, word, tmp=5):
    s(f"v_mov_b32 v{tmp}, {L_FLAG + 4*word}\ns_mov_b32 s{sT1}, 0\n{name}:")
    s.append(Op(f"ds_read_b32 v{tmp+1}, v{tmp}", "raw"))
    s(f"s_add_u32 s{sT1}, s{sT1}, 1"); s.append(Op("s_waitcnt lgkmcnt(0)", "raw"))
    s(f"v_readfirstlane_b32 s{sT2}, v{tmp+1}\ns_cmp_ge_u32 s{sT1}, 2000000\ns_cbranch_scc1 {name}D\ns_cmp_lg_u32 s{sT2}, 0\ns_cbranch_scc1 {name}D\ns_sleep 1\ns_branch {name}\n{name}D:")

TT = 176
def trig(s, dst_c, dst_s, src, scale):
    s(f"v_cvt_f32_u32 v9, {src}\nv_mul_f32 v9, {scale}, v9\nv_cos_f32 v{dst_c}, v9\nv_sin_f32 v{dst_s}, v9")

def tables():
    s = Stream()
    R2048, R64, R32 = f2h(1/2048), f2h(1/64), f2h(1/32)
    a, b, c, d = TT, TT + 8, TT + 16, TT + 32
    s(f"v_and_b32 v12, 31, v{vL}\nv_lshrrev_b32 v13, 5, v{vL}\nv_lshlrev_b32 v14, 4, v{vL}")
    s(f"s_lshl_b32 s{sT2}, s{sW}, 3\ns_lshl_b32 s{sT3}, s{sW}, 11\nv_add_u32 v15, s{sT3}, v14")
    s(f"v_lshl_add_u32 v16, v13, 2, s{sT2}")
    for r in range(4):
        s(f"v_add_u32 v17, {r}, v16\nv_mul_u32_u24 v17, v17, v12"); trig(s, a + r, a + 4 + r, "v17", R2048)
    s(f"ds_write_b128 v15, v[{a}:{a+3}] offset:{L_T1}\nds_write_b128 v15, v[{a+4}:{a+7}] offset:{L_T1 + 1024}")
    s(f"s_lshr_b32 s{sT2}, s{sW}, 2\ns_lshl_b32 s{sT2}, s{sT2}, 5\nv_add_u32 v18, s{sT2}, v12")
    s(f"s_and_b32 s{sT2}, s{sW}, 3\ns_lshl_b32 s{sT2}, s{sT2}, 3\nv_lshl_add_u32 v16, v13, 2, s{sT2}")
    for r in range(4):
        s(f"v_add_u32 v17, {r}, v16\nv_mul_u32_u24 v17, v17, v18"); trig(s, b + r, b + 4 + r, "v17", R2048)
    sc = f2h(1.0 / (640 * 2048))
    for r in range(8): s(f"v_mul_f32 v{b+r}, {sc}, v{b+r}")
    s(f"ds_write_b128 v15, v[{b}:{b+3}] offset:{L_T3}\nds_write_b128 v15, v[{b+4}:{b+7}] offset:{L_T3 + 1024}")
    def dft_frag(g, mask, scale):
        for j in range(8):
            g(f"v_add_u32 v17, {8*(j >> 2) + (j & 3)}, v16\nv_mul_u32_u24 v17, v17, v18\nv_and_b32 v17, {mask}, v17"); trig(g, c + j, c + 8 + j, "v17", scale)
        for jj in range(4):
            g(f"v_cvt_pk_bf16_f32 v{d+jj}, v{c+2*jj}, v{c+1+2*jj}\nv_cvt_pk_bf16_f32 v{d+8+jj}, v{c+8+2*jj}, v{c+9+2*jj}")
            g(f"v_xor_b32 v{d+4+jj}, 0x80008000, v{d+8+jj}")
    s(f"s_and_b32 s{sT2}, s{sW}, 3\ns_lshl_b32 s{sT2}, s{sT2}, 4\nv_lshl_add_u32 v16, v13, 2, s{sT2}")
    dft_frag(s, 63, R64)
    s(f"s_lshl_b32 s{sT3}, s{sW}, 10\ns_add_u32 s{sT3}, s{sT3}, {L_F64}\nv_add_u32 v15, s{sT3}, v14")
    s(f"ds_write_b128 v15, v[{d}:{d+3}]\nds_write_b128 v15, v[{d+4}:{d+7}] offset:8192\nds_write_b128 v15, v[{d+8}:{d+11}] offset:16384")
    s(f"s_cmp_lt_u32 s{sW}, 6\ns_cbranch_scc1 K2_NOF32")
    s(f"s_sub_u32 s{sT1}, s{sW}, 6\ns_lshl_b32 s{sT2}, s{sT1}, 4\nv_lshl_add_u32 v16, v13, 2, s{sT2}\nv_mov_b32 v18, v12")
    dft_frag(s, 31, R32)
    s(f"s_lshl_b32 s{sT3}, s{sT1}, 10\ns_add_u32 s{sT3}, s{sT3}, {L_F32}\nv_add_u32 v15, s{sT3}, v14")
    s(f"ds_write_b128 v15, v[{d}:{d+3}]\nds_write_b128 v15, v[{d+4}:{d+7}] offset:2048\nds_write_b128 v15, v[{d+8}:{d+11}] offset:4096")
    s(f"K2_NOF32:")
    return s

SETS = [20, 56, 92, 128]
ACC = 176
XR, EA, EG = 128, 164, 169
NH = 14

def gemm_path():
    s = Stream()
    s(f"v_lshlrev_b32 v2, 4, v{vL}")
    s(f"s_mul_i32 s{sT0}, s{sW}, 14\ns_cmp_eq_u32 s{sW}, 3\ns_cselect_b32 s{sT1}, 1, 0\ns_sub_u32 s{sT0}, s{sT0}, s{sT1}")
    s(f"s_lshl_b32 s{sT1}, s{sMB}, 2\ns_mul_i32 s{sT1}, s{sT1}, 54\ns_add_u32 s{sT1}, s{sT1}, s{sT0}\ns_lshl_b32 s{sT1}, s{sT1}, 10\ns_add_u32 s{sH}, s{sT1}, {WS_H}")
    for st in range(1, 4): s(f"s_add_u32 s{sH+st}, s{sH}, {st*54*1024}")
    s(f"s_mul_i32 s{sT1}, s{sNB}, {5*74}\ns_add_u32 s{sT1}, s{sT1}, s{sT0}\ns_lshl_b32 s{sT1}, s{sT1}, 10\ns_add_u32 s{sB}, s{sT1}, {WS_WB}")
    for dt in range(1, 5): s(f"s_add_u32 s{sB+dt}, s{sB}, {dt*74*1024}")
    def loads(u, which="hb"):
        st0 = SETS[u % 4]
        g = Stream()
        if u < 3:
            for kind in which:
                for i in range(4 if kind == "h" else 5):
                    r = st0 + 4 * i if kind == "h" else st0 + 16 + 4 * i
                    so = sH + i if kind == "h" else sB + i
                    g(f"buffer_load_dwordx4 v[{r}:{r+3}], v2, s[{sWK}:{sWK+3}], s{so} offen offset:{u*1024}", tag=f"ld{u}")
            if u == 2 and which == "h": g(f"s_add_u32 s{sWK}, s{sWK}, 3072\ns_addc_u32 s{sWK+1}, s{sWK+1}, 0")
            return g
        if u == NH - 1:
            g(f"s_cmp_ge_u32 s{sW}, 2\ns_cselect_b32 s{sWK+2}, 0, s{sWK+2}")
        if u < NH:
            order = [("h", 0), ("b", 0), ("h", 1), ("b", 1), ("h", 2), ("b", 2), ("h", 3), ("b", 3), ("b", 4)]
            for kind, i in order:
                r = st0 + 4 * i if kind == "h" else st0 + 16 + 4 * i
                so = sH + i if kind == "h" else sB + i
                g(f"buffer_load_dwordx4 v[{r}:{r+3}], v2, s[{sWK}:{sWK+3}], s{so} offen", tag=f"ld{u}")
            g(f"s_add_u32 s{sWK}, s{sWK}, 1024\ns_addc_u32 s{sWK+1}, s{sWK+1}, 0")
        else:
            z = u - NH
            if z == 0:
                g(f"s_mul_i32 s{sT1}, s{sNB}, {5*74}\ns_mul_i32 s{sT0}, s{sW}, 5\ns_add_u32 s{sT1}, s{sT1}, s{sT0}\ns_add_u32 s{sT1}, s{sT1}, 54")
                g(f"s_lshl_b32 s{sT1}, s{sT1}, 10\ns_add_u32 s{sB}, s{sT1}, {WS_WB}")
                for dt in range(1, 5): g(f"s_add_u32 s{sB+dt}, s{sB}, {dt*74*1024}")
            if z == 4:
                for dt in range(5): g(f"s_add_u32 s{sB+dt}, s{sB+dt}, 4096")
            for dt in range(5):
                r = st0 + 16 + 4 * dt
                g(f"buffer_load_dwordx4 v[{r}:{r+3}], v2, s[{sWS}:{sWS+3}], s{sB+dt} offen offset:{(z & 3)*1024}", tag=f"ld{u}")
        return g
    def mfmas(u):
        st0 = SETS[u % 4]
        g = Stream()
        for st in range(4):
            for dt in range(5):
                acc = ACC + 4 * (5 * st + dt)
                c = "0" if u == 0 else f"v[{acc}:{acc+3}]"
                g(f"v_mfma_f32_16x16x32_bf16 v[{acc}:{acc+3}], v[{st0+16+4*dt}:{st0+19+4*dt}], v[{st0+4*st}:{st0+4*st+3}], {c}")
        return g
    g = Stream()
    g(f"s_cmp_lg_u32 s{sW}, 0\ns_cbranch_scc1 P2_GW1")
    g(f"v_and_b32 v3, 7, v{vL}\nv_lshlrev_b32 v3, 7, v3\nv_mov_b32 v4, 27\ns_and_b32 s{sT3}, s2, 7\ns_lshl_b32 s{sT3}, s{sT3}, 10\ns_add_u32 s43, s{sT3}, {WS_FLAG + FL_WD}")
    spin_global(g, "P2_PWD", 3, 4, 5, 43)
    lds_signal(g, 4)
    g("s_branch P2_GW2\nP2_GW1:")
    lds_wait(g, "P2_LWD", 4)
    g("P2_GW2:")
    s.extend(g)
    for u in range(3): s.extend(loads(u, "b"))
    g = Stream()
    g(f"s_cmp_lg_u32 s{sW}, 0\ns_cbranch_scc1 P2_GW3")
    g(f"s_lshr_b32 s{sT3}, s{sMB}, 2\ns_lshl_b32 s{sT3}, s{sT3}, 7\ns_and_b32 s43, s2, 7\ns_lshl_b32 s43, s43, 10\ns_add_u32 s43, s43, s{sT3}\ns_add_u32 s43, s43, {WS_FLAG + FL_H}")
    g("v_mov_b32 v3, 0\nv_mov_b32 v4, 27")
    spin_global(g, "P2_PH", 3, 4, 5, 43)
    lds_signal(g, 5)
    g("s_branch P2_GW4\nP2_GW3:")
    lds_wait(g, "P2_LH", 5)
    g("P2_GW4:")
    s.extend(g)
    stamp(s, 4)
    for u in range(3): s.extend(loads(u, "h"))
    def epi_addr():
        g = Stream()
        g(f"s_lshl_b32 s{sT2}, s{sW}, 4")
        for i in range(5):
            g(f"v_add_u32 v6, {64*i}, v{vL}\nv_mul_u32_u24 v7, 3277, v6\nv_lshrrev_b32 v7, 16, v7")
            g(f"v_mul_u32_u24 v8, 20, v7\nv_sub_u32 v8, v6, v8\nv_add_u32 v7, s{sT2}, v7")
            g(f"v_mul_u32_u24 v9, 336, v7\nv_lshl_add_u32 v9, v8, 4, v9\nv_add_u32 v{EA+i}, {L_GEMM}, v9")
            g(f"v_mul_u32_u24 v9, 1280, v7\nv_lshl_add_u32 v{EG+i}, v8, 3, v9")
        g(f"s_lshl_b32 s{sT2}, s{sMB}, 6\ns_mul_i32 s{sT2}, s{sT2}, 1280\ns_mul_i32 s{sT3}, s{sNB}, 160\ns_add_u32 s58, s{sT2}, s{sT3}")
        return g
    def z_addr():
        g = Stream()
        g(f"v_lshrrev_b32 v6, 3, v{vL}\nv_lshlrev_b32 v6, 12, v6\nv_bfe_u32 v7, v{vL}, 4, 1\nv_lshlrev_b32 v7, 1, v7\nv_and_b32 v8, 7, v{vL}\nv_xor_b32 v7, v7, v8")
        g(f"v_lshl_add_u32 v16, v7, 4, v6\nv_xor_b32 v17, 64, v16")
        g(f"s_mul_i32 s53, s{sW}, {160*4096}\ns_lshl_b32 s{sT3}, s{sMB}, 7\ns_add_u32 s53, s53, s{sT3}\ns_add_u32 s53, s53, {WS_ZT}")
        g(f"s_mul_i32 s59, s{sW}, {RED}\ns_add_u32 s59, s59, {L_GEMM}")
        g(f"v_and_b32 v8, 15, v{vL}\nv_lshrrev_b32 v9, 4, v{vL}\nv_lshrrev_b32 v10, 2, v8\nv_lshl_add_u32 v10, v9, 3, v10")
        g(f"v_bfe_u32 v11, v{vL}, 3, 1\nv_and_b32 v12, 1, v9\nv_lshl_or_b32 v11, v12, 1, v11")
        g(f"v_lshlrev_b32 v11, 5, v11\nv_lshl_add_u32 v10, v10, 7, v11\nv_and_b32 v12, 3, v8\nv_lshl_add_u32 v10, v12, 3, v10\nv_add_u32 v12, s59, v10")
        for st in range(1, 4): g(f"v_xor_b32 v{12+st}, {32*st}, v12")
        return g
    def poll_issue():
        g = Stream()
        g(f"v_and_b32 v3, 7, v{vL}\nv_mov_b32 v4, 40")
        g(f"v_lshlrev_b32 v3, 7, v3\ns_and_b32 s{sT3}, s2, 31\ns_lshl_b32 s{sT3}, s{sT3}, 10\ns_add_u32 s43, s{sT3}, {WS_FLAG}")
        g(f"s_cmp_eq_u32 s{sW}, 0\ns_cselect_b32 s{sT3}, s43, 0x40000000")
        g(f"buffer_load_dword v5, v3, s[{sWS}:{sWS+3}], s{sT3} offen sc1", tag="poll")
        return g
    extra = {5: epi_addr(), 7: z_addr(), 12: poll_issue()}
    for u in range(NH):
        s.wait_vm(f"ld{u}")
        s.extend(merge(mfmas(u), [loads(u + 3), extra.get(u, Stream())], front=False))
    stamp(s, 5)
    s.extend(loads(NH + 3))
    g = Stream()
    g(f"s_cmp_lg_u32 s{sW}, 0\ns_cbranch_scc1 K2_SPUN")
    g.wait_vm("poll")
    g(f"v_cmp_ne_u32 vcc, v4, v5\ns_cbranch_vccz K2_SPUN\ns_mov_b32 s{sT1}, 0\nK2_SPINL:\ns_sleep 4")
    g.append(Op(f"buffer_load_dword v5, v3, s[{sWS}:{sWS+3}], s43 offen sc1", "raw"))
    g(f"s_add_u32 s{sT1}, s{sT1}, 1"); g.append(Op("s_waitcnt vmcnt(0)", "raw"))
    g(f"v_cmp_ne_u32 vcc, v4, v5\ns_cmp_ge_u32 s{sT1}, 100000\ns_cbranch_scc1 K2_SPUN\ns_cbranch_vccnz K2_SPINL\nK2_SPUN:")
    s.group(g)
    s("s_barrier")
    stamp(s, 6)
    for i in range(20):
        s(f"s_add_u32 m0, s59, {i*1024}")
        s(f"buffer_load_dwordx4 v{16 + (i & 1)}, s[{sWS}:{sWS+3}], s53 offen sc1 lds", tag=f"z{i//4}")
        if i < 19: s(f"s_add_u32 s53, s53, {8*4096}")
    def zreads(z):
        g = Stream(); base = SETS[(NH + z) % 4]
        for st in range(4):
            for jh in range(2):
                g(f"ds_read_b64_tr_b16 v[{base+4*st+2*jh}:{base+4*st+2*jh+1}], v{12+st} offset:{z*4096 + jh*512}", tag=f"zr{z}")
        return g
    s.wait_vm("z0"); s.extend(zreads(0))
    for z in range(5):
        nxt = Stream()
        if z < 4:
            nxt.wait_vm(f"z{z+1}"); nxt.extend(zreads(z + 1))
        more = Stream()
        if z == 1: more.extend(loads(NH + 4))
        if z == 2:
            for i in range(5):
                more(f"buffer_load_dwordx2 v[{XR+2*i}:{XR+1+2*i}], v{EG+i}, s[{sX}:{sX+3}], s58 offen", tag="xld")
        s.wait_ds(f"zr{z}"); s.wait_vm(f"ld{NH+z}")
        s.extend(merge(mfmas(NH + z), [nxt, more]))
    s(f"v_and_b32 v8, 15, v{vL}\nv_lshrrev_b32 v9, 4, v{vL}\nv_mul_u32_u24 v10, 336, v8\nv_lshl_add_u32 v10, v9, 4, v10\nv_add_u32 v10, s59, v10")
    for st in range(4):
        for dt in range(5):
            acc = ACC + 4 * (5 * st + dt)
            s(f"ds_write_b128 v10, v[{acc}:{acc+3}] offset:{st*16*336 + dt*64}", tag="rw")
    s.wait_ds("all"); s("s_barrier")
    RB = 20
    for i in range(5):
        for p in range(4):
            r = RB + 16 * i + 4 * p
            s(f"ds_read_b128 v[{r}:{r+3}], v{EA+i} offset:{p*RED}", tag=f"rr{i}")
    s.wait_vm("xld")
    for i in range(5):
        r = RB + 16 * i
        s.wait_ds(f"rr{i}")
        for c in range(4):
            s(f"v_add_f32 v{r+c}, v{r+c}, v{r+4+c}\nv_add_f32 v{r+8+c}, v{r+8+c}, v{r+12+c}\nv_add_f32 v{r+c}, v{r+c}, v{r+8+c}")
        x0, x1 = XR + 2 * i, XR + 2 * i + 1
        s(f"v_lshlrev_b32 v3, 16, v{x0}\nv_and_b32 v4, 0xffff0000, v{x0}\nv_lshlrev_b32 v5, 16, v{x1}\nv_and_b32 v6, 0xffff0000, v{x1}")
        s(f"v_add_f32 v{r}, v{r}, v3\nv_add_f32 v{r+1}, v{r+1}, v4\nv_add_f32 v{r+2}, v{r+2}, v5\nv_add_f32 v{r+3}, v{r+3}, v6")
        s(f"v_cvt_pk_bf16_f32 v{r+4}, v{r}, v{r+1}\nv_cvt_pk_bf16_f32 v{r+5}, v{r+2}, v{r+3}")
        s(f"buffer_store_dwordx2 v[{r+4}:{r+5}], v{EG+i}, s[{sOUT}:{sOUT+3}], s58 offen")
    stamp_out(s, 8, True)
    s("s_endpgm")
    return s

XO, XP = 20, 36
WR = 52
FR, FI, FN = 84, 92, 100
TW = 108
AR, AI = 128, 144
FS = 192
def xo(part, t): return XO + 4 * (2 * part + t)
def xp(part, t): return XP + 4 * (2 * part + t)

def pack(s, g):
    t = g >> 1; o = 2 * (g & 1)
    s(f"v_cvt_pk_bf16_f32 v{xo(0,t)+o}, v224, v225\nv_cvt_pk_bf16_f32 v{xo(0,t)+o+1}, v226, v227")
    s(f"v_cvt_pk_bf16_f32 v{xo(1,t)+o}, v228, v229\nv_cvt_pk_bf16_f32 v{xo(1,t)+o+1}, v230, v231")

def cmul_pass(s, name, sign):
    table = {"t1": L_T1, "t3": L_T3}[name]
    def rd(g):
        b = TW + 8 * (g & 1)
        s(f"ds_read_b128 v[{b}:{b+3}], v10 offset:{table + g*2048}", tag=f"{name}{g}")
        s(f"ds_read_b128 v[{b+4}:{b+7}], v10 offset:{table + g*2048 + 1024}", tag=f"{name}{g}")
    rd(0)
    for g in range(4):
        if g < 3: rd(g + 1)
        s.wait_ds(f"{name}{g}")
        b = TW + 8 * (g & 1)
        for r in range(4):
            re, im, c, sn, t1, t2 = AR + 4*g + r, AI + 4*g + r, b + r, b + 4 + r, 224 + r, 228 + r
            s(f"v_mul_f32 v{t1}, v{re}, v{c}\nv_mul_f32 v{t2}, v{im}, v{c}")
            if sign < 0: s(f"v_fmac_f32 v{t1}, v{im}, v{sn}\nv_fma_f32 v{t2}, -v{re}, v{sn}, v{t2}")
            else: s(f"v_fma_f32 v{t1}, -v{im}, v{sn}, v{t1}\nv_fmac_f32 v{t2}, v{re}, v{sn}")
        pack(s, g)

def exchange(s, n):
    for i in range(4):
        s(f"ds_write_b128 v11, v[{XO+4*i}:{XO+4*i+3}] offset:{(n-1)*4096 + i*1024}")
    s(f"v_mov_b32 v5, {n}\ns_waitcnt lgkmcnt(0)\nds_write_b32 v15, v5")
    s(f"s_mov_b32 s{sT1}, 0\nK2_EX{n}:\nds_read_b32 v6, v16\ns_add_u32 s{sT1}, s{sT1}, 1\ns_waitcnt lgkmcnt(0)")
    s(f"v_readfirstlane_b32 s{sT2}, v6\ns_cmp_ge_u32 s{sT1}, 1000000\ns_cbranch_scc1 K2_EXD{n}\ns_cmp_lt_u32 s{sT2}, {n}\ns_cbranch_scc1 K2_EX{n}\nK2_EXD{n}:")
    for i in range(4):
        s(f"ds_read_b128 v[{XP+4*i}:{XP+4*i+3}], v12 offset:{(n-1)*4096 + i*1024}", tag=f"ex{n}")

def M32(s, d, a, b, first):
    c = "0" if first else f"v[{d}:{d+15}]"
    s(f"v_mfma_f32_32x32x16_bf16 v[{d}:{d+15}], v[{a}:{a+3}], v[{b}:{b+3}], {c}")

def col_path():
    s = Stream()
    s(f"s_and_b32 s52, s{sW}, 1\ns_add_u32 s44, s2, 1\ns_cmp_lt_u32 s{sW}, 6\ns_cbranch_scc1 P2_COLN")
    s(f"s_lshl_b32 s{sT0}, s{sNI}, 3\ns_add_u32 s{sT0}, s{sT0}, s{sMI}")
    s(f"s_cmp_lt_u32 s{sT0}, 192\ns_cbranch_scc1 K2_END")
    s(f"s_add_u32 s44, s{sT0}, 105\ns_cmp_ge_u32 s{sT0}, 216\ns_cselect_b32 s{sT1}, 64, 0\ns_sub_u32 s44, s44, s{sT1}")
    s("P2_COLN:")
    s("s_cmp_eq_u32 s44, 320\ns_cselect_b32 s45, 1, 0\ns_cselect_b32 s46, 0, s44")
    s(f"s_cmp_eq_u32 s46, 0\ns_cselect_b32 s{sWSI+2}, 0, s{sWSI+2}")
    s(f"s_lshl_b32 s47, s46, 13\ns_add_u32 s47, s47, {WS_AT}\ns_lshl_b32 s{sT0}, s52, 11\ns_add_u32 s47, s47, s{sT0}")
    s(f"s_lshl_b32 s{sT0}, s45, 12\ns_add_u32 s48, s47, s{sT0}\ns_add_u32 s47, s47, 4096")
    s(f"s_lshl_b32 s49, s44, 13\ns_add_u32 s49, s49, {WS_WT}\ns_lshl_b32 s{sT0}, s52, 12\ns_add_u32 s49, s49, s{sT0}")
    s(f"s_lshl_b32 s50, s46, 1\ns_add_u32 s50, s50, s45\ns_lshl_b32 s50, s50, 12\ns_add_u32 s50, s50, {WS_ZT}")
    s(f"s_lshl_b32 s{sT0}, s52, 6\ns_add_u32 s50, s50, s{sT0}\ns_add_u32 s51, s50, 4096")
    s(f"v_lshlrev_b32 v4, 4, v{vL}")
    g = Stream()
    g(f"s_cmp_lg_u32 s{sW}, 4\ns_cbranch_scc1 P2_CW1")
    g(f"s_and_b32 s43, s2, 7\ns_lshl_b32 s43, s43, 7\ns_add_u32 s43, s43, {WS_FLAG + FL_AT}\nv_mov_b32 v3, 0\nv_mov_b32 v8, 40")
    spin_global(g, "P2_PAT", 3, 8, 9, 43)
    lds_wait(g, "P2_LWD4", 4)
    lds_signal(g, 6)
    g("s_branch P2_CW2\nP2_CW1:")
    lds_wait(g, "P2_LAT", 6)
    g("P2_CW2:")
    s.extend(g)
    stamp(s, 4)
    if OPT.get("prio", 1): s("s_setprio 3")
    for t in range(2):
        s(f"buffer_load_dwordx4 v[{xo(0,t)}:{xo(0,t)+3}], v4, s[{sWS}:{sWS+3}], s48 offen offset:{t*1024} sc1", tag="in")
        s(f"buffer_load_dwordx4 v[{xo(1,t)}:{xo(1,t)+3}], v4, s[{sWSI}:{sWSI+3}], s47 offen offset:{t*1024} sc1", tag="in")
    for g_ in range(4):
        s(f"buffer_load_dwordx4 v[{WR+4*g_}:{WR+4*g_+3}], v4, s[{sWS}:{sWS+3}], s49 offen offset:{g_*1024} sc1", tag="w")
    s(f"s_lshl_b32 s{sT0}, s52, 13\nv_add_u32 v10, s{sT0}, v4")
    s(f"s_sub_u32 s{sT0}, s{sW}, 4\ns_lshl_b32 s{sT1}, s{sT0}, 13\ns_add_u32 s{sT1}, s{sT1}, {L_EX}\nv_add_u32 v11, s{sT1}, v4")
    s(f"s_xor_b32 s{sT2}, s{sT0}, 1\ns_lshl_b32 s{sT1}, s{sT2}, 13\ns_add_u32 s{sT1}, s{sT1}, {L_EX}\nv_add_u32 v12, s{sT1}, v4")
    s(f"s_lshl_b32 s{sT0}, s{sT0}, 2\ns_add_u32 s{sT0}, s{sT0}, {L_FLAG}\nv_mov_b32 v15, s{sT0}\ns_lshl_b32 s{sT2}, s{sT2}, 2\ns_add_u32 s{sT2}, s{sT2}, {L_FLAG}\nv_mov_b32 v16, s{sT2}")
    s(f"s_mul_i32 s{sT0}, s52, 6144\ns_add_u32 s{sT0}, s{sT0}, {L_F64}\nv_add_u32 v13, s{sT0}, v4")
    s(f"s_lshl_b32 s{sT0}, s52, 11\ns_add_u32 s{sT0}, s{sT0}, {L_F64 + 2048}\nv_add_u32 v14, s{sT0}, v4")
    for t in range(2):
        s(f"ds_read_b128 v[{FR+4*t}:{FR+4*t+3}], v4 offset:{L_F32 + t*1024}", tag="f32")
        s(f"ds_read_b128 v[{FI+4*t}:{FI+4*t+3}], v4 offset:{L_F32 + 2048 + t*1024}", tag="f32")
        s(f"ds_read_b128 v[{FN+4*t}:{FN+4*t+3}], v4 offset:{L_F32 + 4096 + t*1024}", tag="f32")
    s.wait_ds("f32"); s.wait_vm("in")
    for t in range(2):
        M32(s, AR, xo(0,t), FR+4*t, t == 0); M32(s, AI, xo(0,t), FI+4*t, t == 0)
        M32(s, AR, xo(1,t), FN+4*t, False); M32(s, AI, xo(1,t), FR+4*t, False)
    def f64rd(k, tag):
        b = FS + 12 * (k & 1); va = 13 if k < 2 else 14; o = (k & 1) * 1024
        s(f"ds_read_b128 v[{b}:{b+3}], v{va} offset:{o}", tag=tag)
        s(f"ds_read_b128 v[{b+4}:{b+7}], v{va} offset:{o + 8192}", tag=tag)
        s(f"ds_read_b128 v[{b+8}:{b+11}], v{va} offset:{o + 16384}", tag=tag)
    cmul_pass(s, "t1", -1)
    f64rd(0, "a0")
    exchange(s, 1)
    for k in range(4):
        if k < 3: f64rd(k + 1, f"a{k+1}")
        s.wait_ds(f"a{k}")
        if k == 2: s.wait_ds("ex1")
        b = FS + 12 * (k & 1); x = xo if k < 2 else xp; t = k & 1
        M32(s, AR, b, x(0,t), k == 0); M32(s, AI, b+4, x(0,t), k == 0)
        M32(s, AR, b+8, x(1,t), False); M32(s, AI, b, x(1,t), False)
    s.wait_vm("w")
    for g in range(4):
        for r in range(4):
            re, im, w, t1, t2 = AR + 4*g + r, AI + 4*g + r, WR + 4*g + r, 224 + r, 228 + r
            s(f"v_lshlrev_b32 v6, 16, v{w}\nv_and_b32 v7, 0xffff0000, v{w}")
            s(f"v_mul_f32 v{t1}, v{re}, v6\nv_mul_f32 v{t2}, v{im}, v6\nv_fma_f32 v{t1}, -v{im}, v7, v{t1}\nv_fmac_f32 v{t2}, v{re}, v7")
        pack(s, g)
    stamp(s, 5)
    f64rd(0, "b0")
    exchange(s, 2)
    for k in range(4):
        if k < 3: f64rd(k + 1, f"b{k+1}")
        s.wait_ds(f"b{k}")
        if k == 2: s.wait_ds("ex2")
        b = FS + 12 * (k & 1); x = xo if k < 2 else xp; t = k & 1
        M32(s, AR, x(0,t), b, k == 0); M32(s, AI, x(1,t), b, k == 0)
        M32(s, AR, x(1,t), b+4, False); M32(s, AI, x(0,t), b+8, False)
    cmul_pass(s, "t3", +1)
    for t in range(2):
        M32(s, AR, xo(0,t), FR+4*t, t == 0); M32(s, AI, xo(1,t), FR+4*t, t == 0)
        M32(s, AR, xo(1,t), FI+4*t, False); M32(s, AI, xo(0,t), FN+4*t, False)
    s(f"s_sub_u32 s{sT0}, s{sW}, 4\ns_mul_i32 s{sT0}, s{sT0}, 5120\ns_add_u32 s{sT0}, s{sT0}, {L_BNC}")
    s(f"v_and_b32 v6, 31, v{vL}\nv_mul_u32_u24 v6, 80, v6\nv_lshrrev_b32 v7, 5, v{vL}\nv_lshl_add_u32 v6, v7, 3, v6\nv_add_u32 v6, s{sT0}, v6")
    s(f"v_lshrrev_b32 v7, 2, v{vL}\nv_mul_u32_u24 v8, 80, v7\nv_and_b32 v9, 3, v{vL}\nv_lshl_add_u32 v8, v9, 4, v8\nv_add_u32 v8, s{sT0}, v8")
    s(f"v_lshlrev_b32 v7, 7, v7\nv_lshl_add_u32 v7, v9, 4, v7")
    for part, A0 in ((0, AR), (1, AI)):
        for g in range(4):
            a = A0 + 4*g; o = 224 + 2 * (g & 1) + 4 * part
            s(f"v_cvt_pk_bf16_f32 v{o}, v{a}, v{a+1}\nv_cvt_pk_bf16_f32 v{o+1}, v{a+2}, v{a+3}")
            s(f"ds_write_b64 v6, v[{o}:{o+1}] offset:{part*2560 + 16*g}", tag="ow")
    s.wait_ds("ow")
    for part in range(2):
        for i in range(2):
            r = XO + 8*part + 4*i
            s(f"ds_read_b128 v[{r}:{r+3}], v8 offset:{part*2560 + i*16*80}", tag=f"or{part}{i}")
    for part, so, sr in ((0, 50, sWS), (1, 51, sWSI)):
        for i in range(2):
            r = XO + 8*part + 4*i
            s.wait_ds(f"or{part}{i}")
            s(f"buffer_store_dwordx4 v[{r}:{r+3}], v7, s[{sr}:{sr+3}], s{so} offen offset:{i*16*128} sc1")
    stamp(s, 6)
    s("s_waitcnt vmcnt(0)")
    s(f"v_mov_b32 v5, 3\nds_write_b32 v15, v5\ns_cmp_eq_u32 s52, 1\ns_cbranch_scc1 K2_COLX")
    s(f"s_mov_b32 s{sT1}, 0\nK2_EX3:\nds_read_b32 v6, v16\ns_add_u32 s{sT1}, s{sT1}, 1\ns_waitcnt lgkmcnt(0)")
    s(f"v_readfirstlane_b32 s{sT2}, v6\ns_cmp_ge_u32 s{sT1}, 1000000\ns_cbranch_scc1 K2_EXD3\ns_cmp_lt_u32 s{sT2}, 3\ns_cbranch_scc1 K2_EX3\nK2_EXD3:")
    s(f"s_and_b32 s{sT0}, s44, 7\ns_lshl_b32 s{sT0}, s{sT0}, 7\ns_add_u32 s{sT0}, s{sT0}, {WS_FLAG}")
    s(f"v_mov_b32 v5, 1\nv_lshlrev_b32 v6, 10, v{vL}\ns_mov_b32 exec_hi, 0")
    s(f"buffer_atomic_add v5, v6, s[{sWS}:{sWS+3}], s{sT0} offen")
    s("s_mov_b64 exec, -1\nK2_COLX:")
    stamp_out(s, 8)
    s("s_endpgm")
    return s

def phase2():
    h = entry()
    h(f"s_cmp_ge_u32 s{sW}, 4\ns_cbranch_scc1 K2_COL")
    g = Stream(); g.extend(h); g.extend(gemm_path())
    lines = finish(g)
    c = Stream(); c("K2_COL:"); c.extend(col_path())
    lines += finish(c)
    lines += ["K2_END:", "s_endpgm"]
    return lines
```

```python
from emit import *
from common import *

OOB = 0x40000000
sa, sb, sc, sd = 60, 61, 62, 63
sLD, sST, sON = 64, 65, 66
sGI = 69
LD = 224
PK = 192
vA, vB, vC = 104, 105, 106

def setup(k):
    s = Stream()
    s(f"v_mov_b32 v{vA}, 0\nv_mov_b32 v{vB}, 0\nv_mov_b32 v{vC}, 0")
    s(f"s_lshl_b32 s{sGI}, s{k.sNI}, 3\ns_add_u32 s{sGI}, s{sGI}, s{k.sMI}")
    s(f"s_lshl_b32 s{k.sGW}, s{sGI}, 2\ns_and_b32 s{sa}, s{k.sW}, 3\ns_add_u32 s{k.sGW}, s{k.sGW}, s{sa}")
    s(f"s_lshl_b32 s{sb}, s{sGI}, 1\ns_add_u32 s{sb}, s{sb}, s{k.sW}\ns_sub_u32 s{sb}, s{sb}, 6")
    s(f"s_mul_i32 s{sc}, s{sGI}, 3\ns_add_u32 s{sc}, s{sc}, s{k.sW}\ns_sub_u32 s{sc}, s{sc}, 2")
    s(f"s_cmp_lt_u32 s{sb}, 320\ns_cselect_b32 s{sON}, 1, 0\ns_cmp_ge_u32 s{k.sW}, 6\ns_cselect_b32 s{sON}, s{sON}, 0")
    s(f"s_cmp_lt_u32 s{sc}, 540\ns_cselect_b32 s{sa}, 2, 0\ns_sub_u32 s{sd}, s{k.sW}, 2\ns_cmp_lt_u32 s{sd}, 3\ns_cselect_b32 s{sON}, s{sa}, s{sON}")
    g = Stream()
    g(f"s_cmp_eq_u32 s{sON}, 1\ns_cbranch_scc0 SIDE_S2")
    g(f"s_mul_hi_u32 s{sa}, s{sb}, {-(-(1 << 32)//5)}\ns_mul_i32 s{sd}, s{sa}, 5\ns_sub_u32 s{sb}, s{sb}, s{sd}")
    g(f"s_lshr_b32 s{sd}, s{sa}, 2\ns_lshl_b32 s{sd}, s{sd}, 7\ns_and_b32 s{sLD}, s{sa}, 3\ns_lshl_b32 s{sLD}, s{sLD}, 3\ns_add_u32 s{sLD}, s{sLD}, s{sd}")
    g(f"s_lshl_b32 s{sb}, s{sb}, 6\ns_add_u32 s{sb}, s{sb}, 1")
    g(f"s_mul_i32 s{sLD}, s{sLD}, 642\ns_lshl_b32 s{sd}, s{sb}, 1\ns_add_u32 s{sLD}, s{sLD}, s{sd}")
    g(f"s_lshl_b32 s{sST}, s{sb}, 13\ns_lshr_b32 s{sd}, s{sa}, 3\ns_lshl_b32 s{sd}, s{sd}, 10\ns_add_u32 s{sST}, s{sST}, s{sd}")
    g(f"s_and_b32 s{sd}, s{sa}, 7\ns_lshl_b32 s{sd}, s{sd}, 7\ns_add_u32 s{sST}, s{sST}, s{sd}\ns_add_u32 s{sST}, s{sST}, {WS_WT}")
    g("SIDE_S2:")
    g(f"s_cmp_eq_u32 s{sON}, 2\ns_cbranch_scc0 SIDE_S3")
    g(f"s_mul_hi_u32 s{sa}, s{sc}, {-(-(1 << 32)//10)}\ns_mul_i32 s{sd}, s{sa}, 10\ns_sub_u32 s{sc}, s{sc}, s{sd}")
    g(f"s_mul_i32 s{sLD}, s{sa}, {32*1280}\ns_lshl_b32 s{sd}, s{sc}, 7\ns_add_u32 s{sLD}, s{sLD}, s{sd}")
    g(f"s_mul_i32 s{sST}, s{sc}, {4*74}\ns_add_u32 s{sST}, s{sST}, s{sa}\ns_lshl_b32 s{sST}, s{sST}, 10\ns_add_u32 s{sST}, s{sST}, {WS_WB}")
    g("SIDE_S3:")
    s.group(g)
    return s

def wd_loads(k):
    g = Stream()
    g(f"s_cmp_eq_u32 s{sON}, 2\ns_cbranch_scc0 SIDE_Lb")
    g(f"v_bfe_u32 v{vA}, v{k.vL}, 4, 1\nv_lshlrev_b32 v{vA}, 1, v{vA}\nv_and_b32 v{vB}, 7, v{k.vL}\nv_xor_b32 v{vA}, v{vA}, v{vB}\nv_lshlrev_b32 v{vA}, 4, v{vA}")
    g(f"v_lshrrev_b32 v{vB}, 3, v{k.vL}\nv_mul_u32_u24 v{vB}, 1280, v{vB}\nv_add_u32 v{vA}, v{vA}, v{vB}\nv_xor_b32 v{vB}, 64, v{vA}")
    g(f"s_sub_u32 s{sb}, s{k.sW}, 2\ns_lshl_b32 s{sb}, s{sb}, 12\ns_add_u32 s{sb}, s{sb}, {k.LDS_SCR}")
    for i in range(4):
        g(f"s_add_u32 m0, s{sb}, {i*1024}\ns_add_u32 s{sa}, s{sLD}, {i*8*1280}")
        g.opt(f"buffer_load_dwordx4 v{vA + (i & 1)}, s[{k.sWD}:{k.sWD+3}], s{sa} offen lds", tag="wdld")
    g("SIDE_Lb:")
    s = Stream(); s.group(g); return s

def wd_finish(k):
    out = []
    g = Stream()
    g(f"s_cmp_eq_u32 s{sON}, 2\ns_cbranch_scc0 SIDE_Fa")
    g.wait_opt("wdld")
    g(f"s_sub_u32 s{sb}, s{k.sW}, 2\ns_lshl_b32 s{sb}, s{sb}, 12\ns_add_u32 s{sb}, s{sb}, {k.LDS_SCR}")
    g(f"v_and_b32 v{vA}, 15, v{k.vL}\nv_lshrrev_b32 v{vB}, 4, v{k.vL}\nv_lshrrev_b32 v{vC}, 2, v{vA}\nv_lshl_add_u32 v{vC}, v{vB}, 2, v{vC}")
    g(f"v_bfe_u32 v{vB}, v{vC}, 1, 1\nv_bfe_u32 v{PK}, v{vC}, 3, 1\nv_lshl_or_b32 v{vB}, v{PK}, 1, v{vB}\nv_lshlrev_b32 v{vB}, 5, v{vB}")
    g(f"v_lshl_add_u32 v{vC}, v{vC}, 7, v{vB}\nv_and_b32 v{vA}, 3, v{vA}\nv_lshl_add_u32 v{vC}, v{vA}, 3, v{vC}\nv_add_u32 v{vC}, s{sb}, v{vC}")
    for nt in range(4):
        g(f"v_xor_b32 v{vA}, {32*nt}, v{vC}")
        g.append(Op(f"ds_read_b64_tr_b16 v[{PK+4*nt}:{PK+4*nt+1}], v{vA}", "raw"))
        g.append(Op(f"ds_read_b64_tr_b16 v[{PK+4*nt+2}:{PK+4*nt+3}], v{vA} offset:2048", "raw"))
    g("SIDE_Fa:")
    s = Stream(); s.group(g); out.append(s)
    g = Stream()
    g(f"s_cmp_eq_u32 s{sON}, 2\ns_cbranch_scc0 SIDE_Fc")
    g.append(Op("s_waitcnt lgkmcnt(0)", "raw"))
    g(f"v_lshlrev_b32 v{vB}, 4, v{k.vL}")
    for nt in range(4):
        g(f"s_add_u32 s{sa}, s{sST}, {nt*74*1024}")
        g.opt(f"buffer_store_dwordx4 v[{PK+4*nt}:{PK+4*nt+3}], v{vB}, s[{k.sWS}:{k.sWS+3}], s{sa} offen sc1", tag="wdst")
    g("SIDE_Fc:")
    s = Stream(); s.group(g); out.append(s)
    return out

def wt_loads(k, w):
    g = Stream()
    g(f"s_cmp_eq_u32 s{sON}, 1\ns_cbranch_scc0 SIDE_La{w}\ns_cmp_eq_u32 s{k.sW}, {w}\ns_cbranch_scc0 SIDE_La{w}")
    g(f"v_lshrrev_b32 v{vA}, 3, v{k.vL}\nv_mul_u32_u24 v{vA}, 642, v{vA}\nv_and_b32 v{vB}, 7, v{k.vL}\nv_lshl_add_u32 v{vA}, v{vB}, 4, v{vA}")
    for r in range(4):
        g(f"s_add_u32 s{sa}, s{sLD}, {r*32*642}")
        g.opt(f"buffer_load_dwordx4 v[{LD+8*r}:{LD+8*r+3}], v{vA}, s[{k.sWR}:{k.sWR+3}], s{sa} offen", tag=f"wtld{w}")
        g.opt(f"buffer_load_dwordx4 v[{LD+8*r+4}:{LD+8*r+7}], v{vA}, s[{k.sWI}:{k.sWI+3}], s{sa} offen", tag=f"wtld{w}")
    g(f"SIDE_La{w}:")
    s = Stream(); s.group(g); return s

def wt_finish(k, w):
    out = []
    P, A, B, C = 208, vA, vB, vC
    def guarded(n):
        g = Stream(); g(f"s_cmp_eq_u32 s{sON}, 1\ns_cbranch_scc0 SIDE_T{w}{n}\ns_cmp_eq_u32 s{k.sW}, {w}\ns_cbranch_scc0 SIDE_T{w}{n}"); return g
    def close(g, n):
        g(f"SIDE_T{w}{n}:"); s = Stream(); s.group(g); out.append(s)
    for half in range(2):
        g = guarded(f"a{half}")
        if half == 0:
            g.wait_opt(f"wtld{w}")
            g(f"v_lshrrev_b32 v{A}, 3, v{k.vL}\nv_and_b32 v{B}, 7, v{k.vL}\nv_xor_b32 v{A}, v{A}, v{B}\nv_lshlrev_b32 v{A}, 4, v{A}\nv_lshl_add_u32 v{A}, v{B}, 10, v{A}\nv_add_u32 v{A}, {k.LDS_SCR}, v{A}")
        g(f"s_mov_b32 s{sa}, 0x05040100\ns_mov_b32 s{sc}, 0x07060302")
        for j in range(4*half, 4*half + 4):
            o = P + 4 * (j & 3)
            for r in range(4):
                re, im = LD + 8*r + (j >> 1), LD + 8*r + 4 + (j >> 1)
                g(f"v_perm_b32 v{o+r}, v{im}, v{re}, s{sa if j % 2 == 0 else sc}")
            g.append(Op(f"ds_write_b128 v{A}, v[{o}:{o+3}] offset:{j*128}", "raw"))
        close(g, f"a{half}")
    g = guarded("b")
    g(f"v_lshrrev_b32 v{B}, 3, v{k.vL}\nv_and_b32 v{C}, 7, v{k.vL}\nv_lshlrev_b32 v{A}, 7, v{B}\nv_lshl_add_u32 v{A}, v{C}, 4, v{A}\nv_add_u32 v{A}, {k.LDS_SCR}, v{A}")
    g(f"v_lshlrev_b32 v{B}, 13, v{B}\nv_lshl_add_u32 v{B}, v{C}, 4, v{B}")
    g.append(Op("s_waitcnt lgkmcnt(0)", "raw"))
    for i in range(8):
        g(f"v_xor_b32 v{C}, {16*i}, v{A}")
        g.append(Op(f"ds_read_b128 v[{LD+4*i}:{LD+4*i+3}], v{C} offset:{i*1024}", "raw"))
    close(g, "b")
    g = guarded("c")
    g.append(Op("s_waitcnt lgkmcnt(0)", "raw"))
    for i in range(8):
        g(f"s_add_u32 s{sa}, s{sST}, {i*8*8192}")
        g.opt(f"buffer_store_dwordx4 v[{LD+4*i}:{LD+4*i+3}], v{B}, s[{k.sWS}:{k.sWS+3}], s{sa} offen sc1", tag="wtst")
    close(g, "c")
    return out

def g_task(k):
    s = Stream(); t = 67
    s(f"s_cmp_ge_u32 s{k.sW}, 4\ns_cselect_b32 s{t}, s{k.sGW}, 0x7fffffff")
    s(f"s_mul_hi_u32 s{sa}, s{k.sGW}, {-(-(1 << 32)//20)}\ns_mul_i32 s{sb}, s{sa}, 20\ns_sub_u32 s{sb}, s{k.sGW}, s{sb}")
    s(f"s_mul_i32 s{sc}, s{sa}, 74\ns_add_u32 s{sc}, s{sc}, s{sb}\ns_add_u32 s{sc}, s{sc}, 54\ns_lshl_b32 s{sc}, s{sc}, 10\ns_add_u32 s{sc}, s{sc}, {WS_WB}")
    s(f"s_cmp_lt_u32 s{t}, 800\ns_cselect_b32 s{t}, s{sc}, {OOB}")
    s(f"s_lshl_b32 s{sa}, s{sa}, 4\ns_lshl_b32 s{sb}, s{sb}, 4")
    a, b, c, d, e, f_, g_, P = 107, 108, 109, 110, 111, 112, 113, 92
    s(f"v_and_b32 v{a}, 15, v{k.vL}\nv_add_u32 v{a}, s{sa}, v{a}\nv_cvt_f32_u32 v{b}, v{a}")
    s(f"v_lshrrev_b32 v{c}, 4, v{k.vL}\nv_lshl_add_u32 v{c}, v{c}, 2, s{sb}")
    s(f"s_mov_b32 s{sd}, {f2h(-640.0)}")
    for jj in range(4):
        s(f"v_add_u32 v{d}, {jj}, v{c}\nv_cvt_f32_u32 v{d}, v{d}\nv_mul_f32 v{d}, v{d}, v{b}")
        s(f"v_mul_f32 v{e}, {INV640}, v{d}\nv_floor_f32 v{e}, v{e}\nv_fma_f32 v{e}, v{e}, s{sd}, v{d}\nv_mul_f32 v{e}, {INV640}, v{e}")
        s(f"v_cos_f32 v{f_}, v{e}\nv_sin_f32 v{g_}, v{e}\nv_add_f32 v{f_}, v{f_}, v{f_}\nv_mul_f32 v{g_}, -2.0, v{g_}\nv_cvt_pk_bf16_f32 v{P+jj}, v{f_}, v{g_}")
    s(f"v_and_b32 v{d}, 1, v{a}\nv_lshlrev_b32 v{d}, 31, v{d}\nv_or_b32 v{d}, 0x3f800000, v{d}")
    g = Stream(); g(f"v_cmp_eq_u32 vcc, 0, v{c}\nv_cndmask_b32 v{P}, v{P}, v{d}, vcc"); s.group(g)
    s(f"v_lshlrev_b32 v{b}, 4, v{k.vL}")
    s(f"buffer_store_dwordx4 v[{P}:{P+3}], v{b}, s[{k.sWS}:{k.sWS+3}], s{t} offen sc1", tag="gst")
    return s

def schedule(k):
    ex = {}
    def add(key, st): ex.setdefault(key, Stream()).extend(st)
    add((1, "A"), setup(k))
    add((2, "B"), wd_loads(k))
    f = wd_finish(k)
    add((4, "A"), f[0]); add((4, "B"), f[1])
    g = g_task(k); h = len(g) // 2
    add((3, "A"), g[:h]); add((3, "B"), g[h:])
    add((1, "B"), wt_loads(k, 6)); add((2, "A"), wt_loads(k, 7))
    f = wt_finish(k, 6)
    add((4, "B"), f[0]); add((5, "A"), f[1]); add((5, "A"), f[2]); add((5, "B"), f[3])
    f = wt_finish(k, 7)
    add((5, "B"), f[0]); add((6, "A"), f[1]); add((6, "A"), f[2]); add((6, "B"), f[3])
    return ex
```

```python
import sys
from common import *
from emit import *
import k1, side, k2

HDR = open("cdna_kernels/%s.s.ref" % NAME).read().split("; Override launch")[0]
KNAME = NAME + "_kernel"

def build():
    h = k1.head()
    h(f"s_cmp_ge_u32 s{k1.sNI}, 27\ns_cbranch_scc1 K1_DFT")
    g = Stream(); g.extend(h); g.extend(k1.path(False, side.schedule(k1)))
    lines = finish(g)
    d = Stream(); d("K1_DFT:"); d.extend(k1.path(True))
    lines += finish(d)
    lines += k2.phase2()
    lines += ["K_END:", "s_endpgm"]
    body = f".globl {KNAME}\n.p2align 8\n.type {KNAME},@function\n{KNAME}:\n" + "\n".join(lines) + "\n"
    launch = f"; @launch grid=(256,1,1) block=(512,1,1) lds={k1.LDS_BYTES}"
    return HDR + launch + '\n.amdgcn_target "amdgcn-amd-amdhsa--gfx950"\n.text\n' + body + '.section .rodata,"a"\n' + descriptor(KNAME)

if __name__ == "__main__":
    out = sys.argv[1] if len(sys.argv) > 1 else "out.s"
    if "--stamps" in sys.argv: k1.STAMPS = True; k2.STAMPS = True
    k1.OPT.update(stats=2, pollb=7)
    for a in sys.argv:
        if a.startswith("--opt="):
            for kv in a[6:].split(","):
                k_, v_ = kv.split("="); k1.OPT[k_] = int(v_); k2.OPT[k_] = int(v_)
    open(out, "w").write(build())
```

```python
from emit import *
from common import *

SEQ = [0, 5, 1, 6, 2, 7, 3, 8, 4, 9]

sX, sWG, sWU, sWS, sWD, sWR, sWI, sDBG = 8, 12, 16, 20, 24, 28, 32, 36
sW, sMI, sNI, sWM, sWN = 40, 41, 42, 43, 44
sAI = 45
sALDS, sBLDS, sT0, sT1, sT2, sT3 = 49, 50, 52, 53, 54, 55
sBK = 51
sGW = 76
sMASK = 78
vL = 1
vA0, vA1, vA0h, vA1h, vB0, vB1, vGA0, vGA1, vGB = 10, 11, 12, 13, 14, 15, 16, 17, 18
SET = [20, 52]
ACC = 128
LDS_B = 98304
LDS_ST = 147456
LDS_COL = LDS_ST + 2048
LDS_CP = LDS_ST + 4096
LDS_BYTES = 163840
LDS_SCR = LDS_CP

STAMPS = False
OPT = {}
WS_STAMP = 0x1590000
def stamp(s, i):
    if STAMPS: s(f"s_memrealtime s[{84+2*i}:{85+2*i}]")
def stamp_out(s, n):
    if not STAMPS: return
    s("s_waitcnt vmcnt(0)"); stamp(s, n - 1); s("s_waitcnt lgkmcnt(0)")
    s(f"s_lshl_b32 s{sT1}, s2, 3\ns_add_u32 s{sT1}, s{sT1}, s{sW}\ns_lshl_b32 s{sT1}, s{sT1}, 5\ns_add_u32 s{sT1}, s{sT1}, {WS_STAMP}")
    for i in range(n): s(f"v_mov_b32 v{20+i}, s{84+2*i}")
    s("s_mov_b64 exec, 1")
    s(f"buffer_store_dwordx4 v[20:23], off, s[{sWS}:{sWS+3}], s{sT1}")
    s(f"buffer_store_dwordx4 v[24:27], off, s[{sWS}:{sWS+3}], s{sT1} offset:16")

def head():
    s = Stream()
    if STAMPS: s("s_memrealtime s[84:85]")
    s("s_cmp_ge_u32 s2, 256\ns_cbranch_scc1 K_END")
    s("s_load_dwordx4 s[56:59], s[0:1], 0\ns_load_dwordx2 s[60:61], s[0:1], 16\ns_load_dwordx4 s[64:67], s[0:1], 32")
    s("s_load_dwordx2 s[68:69], s[0:1], 48\ns_load_dwordx4 s[72:75], s[0:1], 64\ns_load_dwordx2 s[82:83], s[0:1], 56")
    s(f"v_and_b32 v{vL}, 63, v0\nv_lshrrev_b32 v2, 6, v0")
    s("s_and_b32 s3, s2, 7\ns_lshr_b32 s4, s2, 3")
    s(f"v_readfirstlane_b32 s{sW}, v2")
    s(f"s_and_b32 s5, s3, 1\ns_lshl_b32 s5, s5, 2\ns_and_b32 s6, s4, 3\ns_add_u32 s{sMI}, s5, s6")
    s(f"s_lshr_b32 s5, s3, 1\ns_lshl_b32 s5, s5, 3\ns_lshr_b32 s6, s4, 2\ns_add_u32 s{sNI}, s5, s6")
    s(f"s_lshr_b32 s{sWM}, s{sW}, 1\ns_and_b32 s{sWN}, s{sW}, 1")
    s(f"s_lshl_b32 s{sALDS}, s{sW}, 12")
    s(f"s_lshl_b32 s{sBLDS}, s{sW}, 10\ns_add_u32 s{sBLDS}, s{sBLDS}, {LDS_B}")
    s("s_waitcnt lgkmcnt(0)")
    srd(s, sX, 56, S * D * 2)
    srd(s, sWR, 58, S * 321 * 2)
    srd(s, sWI, 60, S * 321 * 2)
    srd(s, sWG, 64, D * F * 2)
    srd(s, sWU, 66, D * F * 2)
    srd(s, sWD, 68, F * D * 2)
    srd(s, sDBG, 72, 256)
    srd(s, sWS, 74, WS_SIZE)
    return s

def lds_addr_setup(dft):
    s = Stream()
    s(f"v_and_b32 v2, 15, v{vL}\nv_lshrrev_b32 v3, 4, v{vL}")
    s(f"v_lshrrev_b32 v4, 1, v2\nv_xor_b32 v4, v4, v3\nv_lshlrev_b32 v4, 4, v4")
    s(f"s_lshl_b32 s{sT0}, s{sWM}, 13")
    s(f"v_lshl_add_u32 v4, v2, 7, v4\nv_add_u32 v{vA0}, s{sT0}, v4\nv_xor_b32 v{vA1}, 64, v{vA0}")
    s(f"v_add_u32 v{vA0h}, 0x10000, v{vA0}\nv_add_u32 v{vA1h}, 0x10000, v{vA1}")
    if not dft:
        s(f"v_lshrrev_b32 v4, 2, v2\nv_lshl_add_u32 v4, v3, 3, v4")
        s(f"v_bfe_u32 v5, v{vL}, 3, 1\nv_and_b32 v6, 1, v3\nv_lshl_or_b32 v5, v6, 1, v5")
        s(f"s_lshl_b32 s{sT0}, s{sWN}, 1\nv_xor_b32 v5, s{sT0}, v5")
        s(f"v_lshlrev_b32 v5, 5, v5\nv_lshl_add_u32 v4, v4, 7, v5")
        s(f"v_and_b32 v6, 3, v2\nv_lshl_add_u32 v4, v6, 3, v4")
        s(f"v_add_u32 v{vB0}, {LDS_B}, v4\nv_xor_b32 v{vB1}, 32, v{vB0}")
    else:
        s(f"s_lshl_b32 s{sT0}, s{sWN}, 11\ns_add_u32 s{sT0}, s{sT0}, {LDS_B}")
        s(f"v_lshlrev_b32 v4, 4, v{vL}\nv_add_u32 v{vB0}, s{sT0}, v4")
    return s

def dma_addr_setup(dft):
    s = Stream()
    s(f"v_and_b32 v2, 7, v{vL}\nv_lshrrev_b32 v3, 4, v{vL}\nv_xor_b32 v2, v2, v3\nv_lshlrev_b32 v2, 4, v2")
    if not dft:
        s(f"v_lshrrev_b32 v4, 3, v{vL}\nv_mul_u32_u24 v4, 1280, v4\nv_add_u32 v{vGA0}, v4, v2")
        s(f"s_lshl_b32 s{sT0}, s{sMI}, 8\ns_lshl_b32 s{sT1}, s{sW}, 5\ns_add_u32 s{sT0}, s{sT0}, s{sT1}\ns_mul_i32 s{sAI}, s{sT0}, 1280")
        for i in range(1, 4): s(f"s_add_u32 s{sAI+i}, s{sAI}, {8*i*1280}")
        s(f"v_bfe_u32 v4, v{vL}, 4, 1\ns_and_b32 s{sT0}, s{sW}, 1\ns_lshl_b32 s{sT0}, s{sT0}, 1\nv_or_b32 v4, s{sT0}, v4")
        s(f"v_lshlrev_b32 v4, 1, v4\nv_and_b32 v5, 7, v{vL}\nv_xor_b32 v4, v4, v5\nv_lshlrev_b32 v4, 4, v4")
        s(f"v_lshrrev_b32 v5, 3, v{vL}\ns_lshl_b32 s{sT0}, s{sW}, 3\nv_add_u32 v5, s{sT0}, v5\nv_mul_u32_u24 v5, 3456, v5")
        s(f"s_lshl_b32 s{sT0}, s{sNI}, 7\nv_add3_u32 v{vGB}, v5, v4, s{sT0}")
    else:
        s(f"v_bfe_u32 v4, v{vL}, 3, 2\nv_lshlrev_b32 v4, 6, v4\nv_lshrrev_b32 v5, 5, v{vL}\nv_add_u32 v4, v4, v5")
        s(f"v_mul_u32_u24 v4, 1280, v4\nv_add_u32 v{vGA0}, v4, v2")
        s(f"s_and_b32 s{sT0}, s{sMI}, 1\ns_lshl_b32 s{sT0}, s{sT0}, 5")
        s(f"s_bfe_u32 s{sT1}, s{sMI}, 0x10001\ns_lshl_b32 s{sT1}, s{sT1}, 8\ns_add_u32 s{sT0}, s{sT0}, s{sT1}")
        s(f"s_lshr_b32 s{sT1}, s{sMI}, 2\ns_lshl_b32 s{sT1}, s{sT1}, 10\ns_add_u32 s{sT0}, s{sT0}, s{sT1}")
        s(f"s_lshl_b32 s{sT1}, s{sWM}, 3\ns_add_u32 s{sT0}, s{sT0}, s{sT1}\ns_lshl_b32 s{sT1}, s{sWN}, 2\ns_add_u32 s{sT0}, s{sT0}, s{sT1}")
        s(f"s_mul_i32 s{sAI}, s{sT0}, 1280")
        for i in range(1, 4): s(f"s_add_u32 s{sAI+i}, s{sAI}, {(512*(i>>1) + 2*(i&1))*1280}")
    s(f"v_xor_b32 v{vGA1}, 64, v{vGA0}")
    return s

def dma_stage(b, dft):
    kb = SEQ[b]; sg = b % 3
    groups = []
    for i in range(4):
        g = Stream()
        g(f"s_add_u32 m0, s{sALDS}, {sg*32768 + i*1024}\ns_add_u32 s{sT0}, s{sAI+i}, {kb*128}")
        g(f"buffer_load_dwordx4 v{vGA0 + (i&1)}, s[{sX}:{sX+3}], s{sT0} offen lds", tag=f"stage{b}")
        u = Stream(); u.group(g); groups.append(u)
    if not dft:
        for mat, srdn in ((0, sWG), (1, sWU)):
            g = Stream()
            g(f"s_add_u32 m0, s{sBLDS}, {sg*16384 + mat*8192}\ns_mov_b32 s{sT0}, {kb*64*3456}")
            g(f"buffer_load_dwordx4 v{vGB}, s[{srdn}:{srdn+3}], s{sT0} offen lds", tag=f"stage{b}")
            u = Stream(); u.group(g); groups.append(u)
    return groups

def frag_reads(u, dft):
    b, ks = u >> 1, u & 1
    sg = b % 3; st = SET[u & 1]
    s = Stream()
    va = (vA0, vA1)[ks] if sg < 2 else (vA0h, vA1h)[ks]
    aoff = (sg % 2) * 32768 if sg < 2 else 0
    A = [f"ds_read_b128 v[{st+4*mt}:{st+4*mt+3}], v{va} offset:{aoff + mt*2048}" for mt in range(4)]
    B = []
    if not dft:
        for mat in range(2):
            for a in range(2):
                r = st + 16 + 4 * (2 * mat + a)
                for jh in range(2):
                    B.append(f"ds_read_b64_tr_b16 v[{r+2*jh}:{r+2*jh+1}], v{vB0 + a} offset:{sg*16384 + mat*8192 + ks*4096 + jh*512}")
    else:
        buf = (b >> 1) & 1
        for nt in range(4):
            part, gk = nt >> 1, nt & 1
            r = st + 16 + 4 * nt
            B.append(f"ds_read_b128 v[{r}:{r+3}], v{vB0} offset:{buf*16384 + ks*8192 + part*4096 + gk*1024}")
    order = []
    if not dft:
        order = [A[0], B[0], B[1], A[1], B[2], B[3], A[2], B[4], B[5], A[3], B[6], B[7]]
    else:
        order = [A[0], B[0], A[1], B[1], A[2], B[2], A[3], B[3]]
    for t in order: s(t, tag=f"rd{u}")
    return s

def mfmas(u, dft):
    first = (u == 0) or (dft and u == 2)
    st = SET[u & 1]
    s = Stream()
    hi = dft and SEQ[u >> 1] >= 5
    pairs = sorted([(mt, nt) for mt in range(4) for nt in range(4)], key=lambda p: (max(p), p[0] + p[1]))
    for mt, nt in pairs:
        if not dft:
            acc = ACC + 32 * (nt >> 1) + 4 * (2 * mt + (nt & 1))
            s(f"v_mfma_f32_16x16x32_bf16 v[{acc}:{acc+3}], v[{st+16+4*nt}:{st+19+4*nt}], v[{st+4*mt}:{st+4*mt+3}], {'0' if first else f'v[{acc}:{acc+3}]'}")
        else:
            acc = ACC + (64 if hi else 0) + 4 * (4 * mt + nt)
            s(f"v_mfma_f32_16x16x32_bf16 v[{acc}:{acc+3}], v[{st+4*mt}:{st+4*mt+3}], v[{st+16+4*nt}:{st+19+4*nt}], {'0' if first else f'v[{acc}:{acc+3}]'}")
    return s

def stats_loads(dft):
    s = Stream()
    s(f"s_lshl_b32 s{sT1}, s{sMI}, 8\ns_lshl_b32 s{sT2}, s{sNI}, 3\ns_add_u32 s{sT1}, s{sT1}, s{sT2}\ns_add_u32 s{sT1}, s{sT1}, s{sW}")
    s(f"s_mul_i32 s{sT2}, s{sT1}, 1280\ns_lshl_b32 s77, s{sT1}, 3")
    s(f"v_lshlrev_b32 v2, 4, v{vL}\nv_lshlrev_b32 v3, 2, v{vL}")
    s(f"buffer_load_dwordx4 v[116:119], v2, s[{sX}:{sX+3}], s{sT2} offen", tag="rowld")
    s(f"buffer_load_dword v120, v3, s[{sX}:{sX+3}], s{sT2} offen offset:1024", tag="rowld")
    if not dft:
        s(f"v_lshrrev_b32 v4, 5, v{vL}\nv_mul_u32_u24 v4, 3456, v4\nv_and_b32 v5, 31, v{vL}\nv_lshl_add_u32 v4, v5, 2, v4")
        s(f"s_mul_i32 s{sT2}, s{sMI}, 80\ns_mul_i32 s{sT3}, s{sW}, 10\ns_add_u32 s{sT2}, s{sT2}, s{sT3}\ns_mul_i32 s{sT2}, s{sT2}, 3456")
        s(f"s_lshl_b32 s{sT3}, s{sNI}, 7\ns_add_u32 s{sT2}, s{sT2}, s{sT3}")
        for i in range(5):
            s(f"buffer_load_dword v{92+i}, v4, s[{sWG}:{sWG+3}], s{sT2} offen", tag="colld")
            s(f"buffer_load_dword v{97+i}, v4, s[{sWU}:{sWU+3}], s{sT2} offen", tag="colld")
            if i < 4: s(f"s_add_u32 s{sT2}, s{sT2}, {2*3456}")
    return s

def row_stats():
    s = Stream()
    s.wait_vm("rowld")
    s("v_mov_b32 v122, 0\nv_mov_b32 v123, 0")
    for r in range(116, 121):
        s(f"v_lshlrev_b32 v2, 16, v{r}\nv_and_b32 v3, 0xffff0000, v{r}")
        s("v_add_f32 v122, v122, v2\nv_fmac_f32 v123, v2, v2\nv_add_f32 v122, v122, v3\nv_fmac_f32 v123, v3, v3")
    for ctl in ("row_shr:1 row_mask:0xf bank_mask:0xf bound_ctrl:0", "row_shr:2 row_mask:0xf bank_mask:0xf bound_ctrl:0",
                "row_shr:4 row_mask:0xf bank_mask:0xf bound_ctrl:0", "row_shr:8 row_mask:0xf bank_mask:0xf bound_ctrl:0",
                "row_bcast:15 row_mask:0xa bank_mask:0xf", "row_bcast:31 row_mask:0xc bank_mask:0xf"):
        s(f"v_add_f32_dpp v122, v122, v122 {ctl}\nv_add_f32_dpp v123, v123, v123 {ctl}")
    s(f"v_mul_f32 v122, {INV640}, v122\nv_mul_f32 v123, {INV640}, v123")
    s("v_fma_f32 v123, -v122, v122, v123\nv_max_f32 v123, 0, v123")
    s("v_cvt_pk_bf16_f32 v122, v122, v123\nv_and_b32 v123, 0xffff0000, v122\nv_lshlrev_b32 v122, 16, v122")
    s("v_add_f32 v123, 0x3727c5ac, v123\nv_cvt_pk_bf16_f32 v123, v123, v123\nv_lshlrev_b32 v123, 16, v123")
    s("v_sqrt_f32 v123, v123\nv_cvt_pk_bf16_f32 v123, v123, v123\nv_lshlrev_b32 v123, 16, v123\nv_rcp_f32 v123, v123")
    g = Stream()
    g(f"s_add_u32 s77, s77, {WS_STAT}\ns_lshl_b64 exec, 1, 63")
    g(f"buffer_store_dwordx2 v[122:123], off, s[{sWS}:{sWS+3}], s77 sc1", tag="pub")
    g("s_mov_b64 exec, -1")
    s.group(g)
    return s

def col_stats():
    s = Stream()
    if True:
        s.wait_vm("colld")
        s("v_mov_b32 v2, 0\nv_mov_b32 v3, 0\nv_mov_b32 v4, 0\nv_mov_b32 v5, 0")
        for i in range(5):
            s(f"v_lshlrev_b32 v6, 16, v{92+i}\nv_and_b32 v7, 0xffff0000, v{92+i}\nv_add_f32 v2, v2, v6\nv_add_f32 v3, v3, v7")
            s(f"v_lshlrev_b32 v6, 16, v{97+i}\nv_and_b32 v7, 0xffff0000, v{97+i}\nv_add_f32 v4, v4, v6\nv_add_f32 v5, v5, v7")
        s("v_permlane32_swap_b32 v2, v4\nv_permlane32_swap_b32 v3, v5\nv_add_f32 v2, v2, v4\nv_add_f32 v3, v3, v5")
        s(f"s_lshl_b32 s{sT1}, s{sW}, 9\ns_add_u32 s{sT1}, s{sT1}, {LDS_CP}\nv_lshlrev_b32 v6, 3, v{vL}\nv_add_u32 v6, s{sT1}, v6")
        s("ds_write_b64 v6, v[2:3]", tag="cpw")
    return s

def colsum_publish():
    s = Stream()
    s(f"v_and_b32 v84, 15, v{vL}\nv_lshrrev_b32 v85, 4, v{vL}\ns_lshl_b32 s{sT1}, s{sW}, 6")
    s(f"v_lshlrev_b32 v86, 9, v85\nv_lshl_add_u32 v86, v84, 2, v86\ns_add_u32 s{sT2}, s{sT1}, {LDS_CP}\nv_add_u32 v86, s{sT2}, v86")
    s("ds_read_b32 v87, v86", tag="cpr"); s("ds_read_b32 v88, v86 offset:2048", tag="cpr")
    s(f"s_lshl_b32 s{sT2}, s{sNI}, 12\ns_lshl_b32 s{sT3}, s{sMI}, 9\ns_add_u32 s{sT2}, s{sT2}, s{sT3}\ns_add_u32 s{sT2}, s{sT2}, s{sT1}\ns_add_u32 s80, s{sT2}, {WS_CPART}")
    s(f"v_lshlrev_b32 v89, 2, v84")
    s.wait_ds("cpr")
    s("v_add_f32 v87, v87, v88\nv_mov_b32 v88, v87\nv_permlane16_swap_b32 v88, v87\nv_add_f32 v87, v87, v88")
    s("v_mov_b32 v88, v87\nv_permlane32_swap_b32 v88, v87\nv_add_f32 v87, v87, v88")
    g = Stream()
    g("s_mov_b64 exec, 0xffff")
    g(f"buffer_store_dword v87, v89, s[{sWS}:{sWS+3}], s80 offen sc1", tag="pub")
    g("s_mov_b64 exec, -1")
    s.group(g)
    return s

sOOB0 = 68
def leader_setup():
    s = Stream()
    s(f"s_cmp_eq_u32 s{sW}, 0\ns_cselect_b32 s{sOOB0}, 0, 0x40000000")
    return s

def arrive():
    g = Stream()
    g(f"s_and_b32 s{sT1}, s2, 7\ns_lshl_b32 s{sT1}, s{sT1}, 5\ns_add_u32 s{sT1}, s{sT1}, s{sOOB0}\nv_mov_b32 v126, 1\ns_mov_b64 exec, 1")
    g(f"buffer_atomic_add v126, off, s[{sDBG}:{sDBG+3}], s{sT1}")
    g("s_mov_b64 exec, -1")
    s = Stream(); s.group(g)
    return s

def poll_issue():
    s = Stream()
    s(f"v_and_b32 v116, 7, v{vL}\nv_lshlrev_b32 v116, 5, v116")
    s(f"buffer_load_dword v117, v116, s[{sDBG}:{sDBG+3}], s{sOOB0} offen sc1", tag="poll")
    return s

def poll_check():
    g = Stream()
    g.wait_vm("poll")
    g(f"s_cmp_lg_u32 s{sW}, 0\ns_cbranch_scc1 K1_SPUN_\\V\nv_cmp_ne_u32 vcc, 32, v117\ns_cbranch_vccnz K1_SPIN_\\V\nK1_SPUN_\\V:")
    s = Stream(); s.group(g)
    return s

def spin_block():
    s = Stream()
    s(f"K1_SPIN_\\V:\ns_mov_b32 s{sT1}, 0\nK1_SPINL_\\V:\ns_sleep 8")
    s.append(Op(f"buffer_load_dword v117, v116, s[{sDBG}:{sDBG+3}], 0 offen sc1", "raw"))
    s(f"s_add_u32 s{sT1}, s{sT1}, 1"); s.append(Op("s_waitcnt vmcnt(0)", "raw"))
    s(f"v_cmp_ne_u32 vcc, 32, v117\ns_cmp_ge_u32 s{sT1}, 100000\ns_cbranch_scc1 K1_SPUN_\\V\ns_cbranch_vccz K1_SPUN_\\V\ns_branch K1_SPINL_\\V")
    return s

def stats_fetch(dft):
    s = Stream()
    if not dft:
        s(f"v_and_b32 v116, 31, v{vL}\ns_lshl_b32 s{sT1}, s{sW}, 5\nv_add_u32 v116, s{sT1}, v116")
        s(f"s_lshl_b32 s{sT2}, s{sMI}, 11\nv_lshlrev_b32 v118, 3, v116\ns_add_u32 s{sT2}, s{sT2}, {WS_STAT}")
        s(f"buffer_load_dwordx2 v[120:121], v118, s[{sWS}:{sWS+3}], s{sT2} offen sc1", tag="stld")
        s(f"v_and_b32 v119, 15, v{vL}\nv_lshrrev_b32 v122, 4, v{vL}\nv_lshlrev_b32 v122, 9, v122\nv_lshl_add_u32 v122, v119, 2, v122")
        s(f"s_lshl_b32 s{sT1}, s{sW}, 6\ns_lshl_b32 s{sT2}, s{sNI}, 12\ns_add_u32 s{sT2}, s{sT2}, s{sT1}\ns_add_u32 s{sT2}, s{sT2}, {WS_CPART}")
        s(f"buffer_load_dword v123, v122, s[{sWS}:{sWS+3}], s{sT2} offen sc1", tag="stld")
        s(f"buffer_load_dword v124, v122, s[{sWS}:{sWS+3}], s{sT2} offen offset:2048 sc1", tag="stld")
    else:
        s(f"v_bfe_u32 v116, v{vL}, 4, 1\nv_lshlrev_b32 v116, 9, v116\nv_and_b32 v118, 3, v{vL}\nv_lshl_add_u32 v116, v118, 6, v116")
        s(f"v_bfe_u32 v118, v{vL}, 2, 2\nv_add_u32 v116, v116, v118")
        s(f"s_mul_hi_u32 s{sT1}, s{sAI}, 0x333334")
        s(f"s_lshl_b32 s{sT1}, s{sT1}, 3\ns_add_u32 s{sT1}, s{sT1}, {WS_STAT}\nv_lshlrev_b32 v118, 3, v116")
        s(f"buffer_load_dwordx2 v[120:121], v118, s[{sWS}:{sWS+3}], s{sT1} offen sc1", tag="stld")
    return s

def stats_store(dft):
    s = Stream()
    s.wait_vm("stld")
    if not dft:
        s(f"v_mul_f32 v121, v121, v121\nv_lshlrev_b32 v118, 3, v116\nv_add_u32 v118, {LDS_ST}, v118")
        s("ds_write_b64 v118, v[120:121]", tag="stw")
        s("v_add_f32 v123, v123, v124\nv_mov_b32 v124, v123\nv_permlane16_swap_b32 v124, v123\nv_add_f32 v123, v123, v124")
        s("v_mov_b32 v124, v123\nv_permlane32_swap_b32 v124, v123\nv_add_f32 v123, v123, v124")
        s(f"s_lshl_b32 s{sT1}, s{sW}, 6\ns_add_u32 s{sT1}, s{sT1}, {LDS_COL}\nv_lshl_add_u32 v119, v119, 2, s{sT1}")
        s("ds_write_b32 v119, v123", tag="stw")
    else:
        s(f"v_and_b32 v118, 31, v{vL}\ns_lshl_b32 s{sT1}, s{sW}, 7\ns_add_u32 s{sT1}, s{sT1}, {LDS_ST}\nv_lshl_add_u32 v118, v118, 2, s{sT1}")
        s("ds_write_b32 v118, v121", tag="stw")
    return s

def zero_flags():
    s = Stream()
    g = Stream()
    g(f"s_lshl_b32 s{sT2}, s2, 7\ns_add_u32 s{sT1}, s{sOOB0}, s{sT2}\ns_add_u32 s{sT1}, s{sT1}, {WS_FLAG}\nv_mov_b32 v126, 0\nv_lshlrev_b32 v127, 15, v{vL}\ns_mov_b64 exec, 3")
    g(f"buffer_store_dword v126, v127, s[{sWS}:{sWS+3}], s{sT1} offen sc1", tag="pub")
    g("s_mov_b64 exec, -1")
    s.group(g)
    s(f"s_cmp_lt_u32 s2, 4\ns_cselect_b32 s{sT1}, 0, 0x40000000\ns_or_b32 s{sT1}, s{sT1}, s{sOOB0}\ns_lshl_b32 s{sT2}, s2, 10\ns_add_u32 s{sT1}, s{sT1}, s{sT2}\ns_add_u32 s{sT1}, s{sT1}, {WS_ZT}")
    s(f"v_mov_b32 v124, 0\nv_mov_b32 v125, 0\nv_mov_b32 v126, 0\nv_mov_b32 v127, 0\nv_lshlrev_b32 v121, 4, v{vL}")
    s(f"buffer_store_dwordx4 v[124:127], v121, s[{sWS}:{sWS+3}], s{sT1} offen sc1", tag="pub")
    return s

def arrive_wd():
    g = Stream()
    arrive_ops(g, sWS, vL, FL_WD, sMI, 8, 10, sOOB0, sT1, 126)
    s = Stream(); s.group(g)
    return s

def epilogue_glu():
    s = Stream()
    s(f"v_and_b32 v2, 15, v{vL}\nv_lshrrev_b32 v3, 4, v{vL}")
    s(f"s_lshl_b32 s{sT1}, s{sWM}, 9\ns_add_u32 s{sT1}, s{sT1}, {LDS_ST}\nv_lshl_add_u32 v4, v2, 3, s{sT1}")
    s(f"s_lshl_b32 s{sT1}, s{sWN}, 7\ns_add_u32 s{sT1}, s{sT1}, {LDS_COL}\nv_lshl_add_u32 v5, v3, 4, s{sT1}")
    for mt in range(4): s(f"ds_read_b64 v[{20+2*mt}:{21+2*mt}], v4 offset:{mt*128}", tag="e1")
    for a in range(2):
        s(f"ds_read_b128 v[{28+4*a}:{31+4*a}], v5 offset:{a*64}", tag="e1")
        s(f"ds_read_b128 v[{36+4*a}:{39+4*a}], v5 offset:{256 + a*64}", tag="e1")
    s(f"s_lshl_b32 s{sT1}, s{sMI}, 4\ns_lshl_b32 s{sT2}, s{sWM}, 2\ns_add_u32 s{sT1}, s{sT1}, s{sT2}\ns_mul_i32 s{sT1}, s{sT1}, 54")
    s(f"s_lshl_b32 s{sT2}, s{sNI}, 1\ns_add_u32 s{sT1}, s{sT1}, s{sT2}\ns_add_u32 s{sT1}, s{sT1}, s{sWN}\ns_lshl_b32 s{sT1}, s{sT1}, 10\ns_add_u32 s{sT1}, s{sT1}, {WS_H}")
    s(f"v_lshlrev_b32 v6, 4, v{vL}")
    s.wait_ds("e1")
    for mt in range(4):
        ms = 20 + 2 * mt
        o = 44 + 4 * (mt & 1) + 8 * 0
        o = 44 + 4 * mt
        for a in range(2):
            G = ACC + 4 * (2 * mt + a); U = G + 32
            for p in range(2):
                g, u = G + 2 * p, U + 2 * p
                cg, cu = 28 + 4 * a + 2 * p, 36 + 4 * a + 2 * p
                s(f"v_pk_fma_f32 v[{g}:{g+1}], v[{ms}:{ms+1}], v[{cg}:{cg+1}], v[{g}:{g+1}] op_sel_hi:[0,1,1] neg_lo:[1,0,0] neg_hi:[1,0,0]")
                s(f"v_pk_fma_f32 v[{u}:{u+1}], v[{ms}:{ms+1}], v[{cu}:{cu+1}], v[{u}:{u+1}] op_sel_hi:[0,1,1] neg_lo:[1,0,0] neg_hi:[1,0,0]")
                s(f"v_pk_mul_f32 v[{g}:{g+1}], v[{g}:{g+1}], v[{ms}:{ms+1}] op_sel:[0,1] op_sel_hi:[1,1]")
                s(f"v_pk_mul_f32 v[{g}:{g+1}], v[{g}:{g+1}], v[{u}:{u+1}]")
                s(f"v_cvt_pk_bf16_f32 v{o + 2*a + p}, v{g}, v{g+1}")
        s(f"buffer_store_dwordx4 v[{o}:{o+3}], v6, s[{sWS}:{sWS+3}], s{sT1} offen sc1")
        if mt < 3: s(f"s_add_u32 s{sT1}, s{sT1}, {54*1024}")
    return s

def epilogue_dft():
    s = Stream()
    s(f"v_and_b32 v2, 15, v{vL}\nv_lshrrev_b32 v3, 4, v{vL}")
    s(f"s_lshl_b32 s{sT1}, s{sWM}, 8\ns_add_u32 s{sT1}, s{sT1}, {LDS_ST}\nv_lshl_add_u32 v4, v3, 4, s{sT1}")
    for mt in range(4): s(f"ds_read_b128 v[{20+4*mt}:{23+4*mt}], v4 offset:{mt*64}", tag="e1")
    s(f"v_and_b32 v5, 1, v{vL}\nv_lshlrev_b32 v5, 31, v5\nv_or_b32 v52, 0x3f800000, v5")
    s(f"s_mul_i32 s{sT1}, s{sW}, 9216\nv_mul_u32_u24 v6, 144, v2\nv_lshl_add_u32 v6, v3, 4, v6\nv_add_u32 v6, s{sT1}, v6")
    s(f"v_lshrrev_b32 v7, 3, v{vL}\nv_and_b32 v8, 7, v{vL}\nv_mul_u32_u24 v9, 144, v7\nv_lshl_add_u32 v9, v8, 4, v9\nv_add_u32 v9, s{sT1}, v9")
    s(f"v_lshlrev_b32 v7, 13, v7\nv_lshl_add_u32 v7, v8, 4, v7")
    s.wait_ds("e1")
    for nt in range(4):
        for P in range(2):
            o = 56 + 4 * ((2 * nt + P) & 3)
            for hh in range(2):
                mt = 2 * P + hh
                lo = ACC + 4 * (4 * mt + nt); hi = lo + 64
                for p in range(2):
                    a, b = lo + 2 * p, hi + 2 * p
                    rs = 20 + 4 * mt + 2 * p; cr = 36 + 4 * mt + 2 * p
                    s(f"v_pk_fma_f32 v[{a}:{a+1}], v[{b}:{b+1}], v[52:53], v[{a}:{a+1}] op_sel_hi:[1,0,1]")
                    s(f"v_pk_mul_f32 v[{a}:{a+1}], v[{a}:{a+1}], v[{rs}:{rs+1}]")
                    s(f"v_cvt_pk_bf16_f32 v{o + 2*hh + p}, v{a}, v{a+1}")
            s(f"ds_write_b128 v6, v[{o}:{o+3}] offset:{nt*16*144 + P*64}", tag="bw")
    s(f"s_sub_u32 s{sT1}, s{sNI}, 27\ns_lshl_b32 s{sT1}, s{sT1}, 1\ns_add_u32 s{sT1}, s{sT1}, s{sWN}\ns_lshl_b32 s{sT1}, s{sT1}, 18")
    s(f"s_and_b32 s{sT2}, s{sMI}, 1\ns_lshl_b32 s{sT2}, s{sT2}, 11\ns_add_u32 s{sT1}, s{sT1}, s{sT2}")
    s(f"s_lshr_b32 s{sT2}, s{sMI}, 2\ns_lshl_b32 s{sT2}, s{sT2}, 10\ns_add_u32 s{sT1}, s{sT1}, s{sT2}")
    s(f"s_bfe_u32 s{sT2}, s{sMI}, 0x10001\ns_lshl_b32 s{sT2}, s{sT2}, 9\ns_add_u32 s{sT1}, s{sT1}, s{sT2}")
    s(f"s_lshl_b32 s{sT2}, s{sWM}, 7\ns_add_u32 s{sT1}, s{sT1}, s{sT2}\ns_add_u32 s{sT1}, s{sT1}, {WS_AT}")
    s.wait_ds("bw")
    for i in range(8):
        r = 60 + 4 * i if i < 8 else 0
        s(f"ds_read_b128 v[{72+4*i}:{75+4*i}], v9 offset:{i*8*144}", tag=f"br{i}")
    for i in range(8):
        nt = i >> 1; part, gk = nt >> 1, nt & 1
        off = (16 * gk + 8 * (i & 1)) * 8192 + part * 4096
        s.wait_ds(f"br{i}")
        s(f"s_add_u32 s{sT2}, s{sT1}, {off}")
        s(f"buffer_store_dwordx4 v[{72+4*i}:{75+4*i}], v7, s[{sWS}:{sWS+3}], s{sT2} offen sc1")
    return s

vROT = 84
vC0, vS0, vC64, vS64 = 98, 99, 100, 101
vFW = 102
vGT = 104
vTMP = 112

def fgen_setup():
    s = Stream()
    s(f"s_sub_u32 s{sT1}, s{sNI}, 27\ns_lshl_b32 s{sT1}, s{sT1}, 6\ns_and_b32 s{sT2}, s{sW}, 3\ns_lshl_b32 s{sT2}, s{sT2}, 4\ns_add_u32 s{sT1}, s{sT1}, s{sT2}")
    s(f"v_and_b32 v2, 15, v{vL}\nv_add_u32 v2, s{sT1}, v2\nv_cvt_f32_u32 v3, v2")
    s(f"v_cmp_eq_u32 s[{sMASK}:{sMASK+1}], 0, v2")
    s(f"s_lshr_b32 s{sT2}, s{sW}, 2\ns_lshl_b32 s{sT2}, s{sT2}, 5\nv_lshrrev_b32 v4, 4, v{vL}\nv_lshl_add_u32 v4, v4, 3, s{sT2}\nv_cvt_f32_u32 v4, v4")
    def angle(dst_c, dst_s, src, neg):
        s(f"v_mul_f32 v5, {INV640}, {src}\nv_floor_f32 v5, v5\nv_fma_f32 v5, v5, s{sT3}, {src}\nv_mul_f32 v5, {INV640}, v5")
        s(f"v_cos_f32 v{dst_c}, v5\nv_sin_f32 v{dst_s}, v5")
        if neg: s(f"v_sub_f32 v{dst_s}, 0, v{dst_s}")
    s(f"s_mov_b32 s{sT3}, {f2h(-640.0)}")
    for j in range(1, 8):
        s(f"v_mul_f32 v6, {float(j) if j in (1,2,4) else f2h(float(j))}, v3")
        angle(vROT + 2*(j-1), vROT + 2*(j-1) + 1, "v6", False)
    s("v_mul_f32 v6, v3, v4"); angle(vC0, vS0, "v6", True)
    s(f"v_mul_f32 v6, {f2h(64.0)}, v3"); angle(vC64, vS64, "v6", False)
    s(f"s_lshr_b32 s{sT1}, s{sW}, 2\ns_lshl_b32 s{sT1}, s{sT1}, 13\ns_and_b32 s{sT2}, s{sW}, 3\ns_lshl_b32 s{sT2}, s{sT2}, 10")
    s(f"s_add_u32 s{sT1}, s{sT1}, s{sT2}\ns_add_u32 s{sT1}, s{sT1}, {LDS_B}\nv_lshlrev_b32 v5, 4, v{vL}\nv_add_u32 v{vFW}, s{sT1}, v5")
    s(f"v_mov_b32 v103, 0xbf803f80")
    return s

def fgen(p):
    s = Stream()
    t = vTMP
    for jj in range(4):
        vals = []
        for j in (2*jj, 2*jj + 1):
            c, sn = t + 2*(j & 1), t + 4 + 2*(j & 1)
            if j == 0:
                vals.append((vC0, vS0)); continue
            cj, sj = vROT + 2*(j-1), vROT + 2*(j-1) + 1
            cc, ss = t + (j & 1), t + 2 + (j & 1)
            s(f"v_mul_f32 v{cc}, v{vC0}, v{cj}\nv_mul_f32 v{ss}, v{vS0}, v{cj}")
            s(f"v_fmac_f32 v{cc}, v{vS0}, v{sj}\nv_fma_f32 v{ss}, -v{vC0}, v{sj}, v{ss}")
            vals.append((cc, ss))
        s(f"v_cvt_pk_bf16_f32 v{vGT+jj}, v{vals[0][0]}, v{vals[1][0]}")
        s(f"v_cvt_pk_bf16_f32 v{vGT+4+jj}, v{vals[0][1]}, v{vals[1][1]}")
        s(f"v_cndmask_b32 v{vGT+4+jj}, v{vGT+4+jj}, v103, s[{sMASK}:{sMASK+1}]")
    buf = p & 1
    s(f"ds_write_b128 v{vFW}, v[{vGT}:{vGT+3}] offset:{buf*16384}", tag=f"fw{p}")
    s(f"ds_write_b128 v{vFW}, v[{vGT+4}:{vGT+7}] offset:{buf*16384 + 4096}", tag=f"fw{p}")
    if p < 4:
        s(f"v_mul_f32 v{t}, v{vC0}, v{vC64}\nv_mul_f32 v{t+1}, v{vS0}, v{vC64}")
        s(f"v_fmac_f32 v{t}, v{vS0}, v{vS64}\nv_fma_f32 v{vS0}, -v{vC0}, v{vS64}, v{t+1}\nv_mov_b32 v{vC0}, v{t}")
    return s

def path(dft, side=None, opts=None):
    V = "D" if dft else "G"
    mode = OPT.get("stats", 1)
    s = Stream()
    s.extend(dma_addr_setup(dft))
    for b in range(2):
        for g in dma_stage(b, dft): s.extend(g)
        if b == 0: s("s_barrier")
    if mode == 2: s.extend(stats_loads(dft))
    s.extend(lds_addr_setup(dft))
    s.extend(leader_setup())
    if STAMPS and OPT.get("dbgout"):
        s("s_waitcnt lgkmcnt(0)")
        s(f"s_or_b32 s{sT1}, s2, s{sW}\ns_cmp_eq_u32 s{sT1}, 0\ns_cselect_b32 s{sT1}, {WS_STAMP}, 0x40000000\nv_mov_b32 v2, s84")
        s(f"buffer_store_dword v2, off, s[{sWS}:{sWS+3}], s{sT1} sc1")
    if dft:
        s.extend(fgen_setup()); s.extend(fgen(0))
    s.wait_ds("all"); s.wait_vm("stage0"); s("s_barrier")
    stamp(s, 1)
    s.extend(frag_reads(0, dft))
    ex = {(b, h): Stream() for b in range(10) for h in "AB"}
    o = OPT.get("sdelay", 1)
    if mode == 1: ex[(o - 1, "B")].extend(stats_loads(dft))
    if mode:
        c = o + OPT.get("sgap", 1) if mode == 1 else 0
        ex[(c, "B")].extend(row_stats())
        if not dft:
            ex[(c, "B")].extend(col_stats())
            ex[(c + 1, "B")].extend(colsum_publish())
        pubwait = c + 3
        ex[(c + 3, "B")].extend(arrive())
        pb = OPT.get("pollb", 7)
        ex[(pb, "A")].extend(poll_issue())
        ex[(pb + 1, "A")].extend(poll_check())
        ex[(pb + 1, "B")].extend(stats_fetch(dft))
    ex[(0, "A")].extend(zero_flags())
    if not dft: ex[(8, "B")].extend(arrive_wd())
    if dft:
        for p in range(1, 5):
            f = fgen(p); h = len(f) // 2
            while f[h].kind == "ds": h -= 1
            ex[(2*p - 2, "B")].extend(f[:h]); ex[(2*p - 1, "A")].extend(f[h:])
    elif side is not None:
        for key, st in side.items():
            if key != "end": ex[key].extend(st)
    pend_dma = dma_stage(2, dft)
    for b in range(10):
        rd = frag_reads(2*b + 1, dft)
        dm = Stream()
        for g in pend_dma: dm.extend(g)
        pend_dma = []
        s.wait_ds(f"rd{2*b}")
        s.extend(merge(mfmas(2*b, dft), [rd, dm, ex[(b, "A")]]))
        s.wait_ds("all")
        if b + 1 <= 9: s.wait_vm(f"stage{b+1}")
        if mode and b == pubwait: s.wait_vm("pub")
        if b == 8 and not dft and side is not None:
            s.wait_vm("gst"); s.wait_opt("wtst")
        s("s_barrier")
        groups = dma_stage(b + 3, dft) if b + 3 <= 9 else []
        half = (len(groups) + 1) // 2
        dm = Stream()
        for g in groups[:half]: dm.extend(g)
        pend_dma = groups[half:]
        rd = frag_reads(2*b + 2, dft) if b < 9 else Stream()
        s.extend(merge(mfmas(2*b + 1, dft), [rd, dm, ex[(b, "B")]]))
    stamp(s, 2)
    if mode:
        s.extend(stats_store(dft)); s.wait_ds("all"); s("s_barrier")
    s.extend(epilogue_dft() if dft else epilogue_glu())
    s("s_branch PHASE2")
    if mode: s.extend(spin_block())
    s = flatten(s)
    for op in s: op.text = op.text.replace("\\V", V)
    return s
```

```python
from emit import *
from common import *
import side

sX, sOUT, sWS, sWK, sDBG, sWSI = 8, 12, 16, 20, 24, 28
sW, sMB, sNB = 40, 70, 71
sMI, sNI = 41, 42
sLEAD = 68
sH, sB = 44, 48
sT0, sT1, sT2, sT3 = 54, 55, 56, 57
vL = 1
RED = 21504
L_T1 = 0
L_T3 = L_T1 + 16384
L_F64 = L_T3 + 16384
L_F32 = L_F64 + 24576
L_FLAG = L_F32 + 6144
L_GEMM = L_FLAG + 128
LDS_BYTES = L_GEMM + 4 * RED
L_EX = L_GEMM
L_BNC = L_EX + 32768
L_WT = L_BNC + 20480

STAMPS = False
OPT = {}
WS_STAMP = 0x1590000
def stamp(s, i):
    if STAMPS: s(f"s_memrealtime s[{84+2*i}:{85+2*i}]")
def stamp_out(s, n, gemm=False):
    if not STAMPS: return
    s("s_waitcnt vmcnt(0)"); stamp(s, n - 1); s("s_waitcnt lgkmcnt(0)")
    s(f"s_lshl_b32 s{sT1}, s2, 3\ns_add_u32 s{sT1}, s{sT1}, s{sW}\ns_lshl_b32 s{sT1}, s{sT1}, 5\ns_add_u32 s{sT1}, s{sT1}, {WS_STAMP}")
    for i in range(n): s(f"v_mov_b32 v{20+i}, s{84+2*i}")
    s("s_mov_b64 exec, 1")
    s(f"buffer_store_dwordx4 v[20:23], off, s[{sWS}:{sWS+3}], s{sT1}")
    s(f"buffer_store_dwordx4 v[24:27], off, s[{sWS}:{sWS+3}], s{sT1} offset:16")
    if OPT.get("dbgout"):
        lab = "G" if gemm else "C"
        s("s_load_dwordx2 s[72:73], s[0:1], 64\ns_waitcnt lgkmcnt(0)")
        srd(s, sDBG, 72, 256)
        s(f"s_mov_b32 s{sT2}, {WS_STAMP}")
        s(f"buffer_load_dword v36, off, s[{sWS}:{sWS+3}], s{sT2} sc1\ns_waitcnt vmcnt(0)\nv_subrev_u32 v36, 200, v36")
        for i in range(1, 8):
            s(f"v_sub_u32 v37, v{20+i}, v36\nbuffer_atomic_umax v37, off, s[{sDBG}:{sDBG+3}], 0 offset:{4*i + (0 if gemm else 32)}")
            s("s_waitcnt vmcnt(0)")

def entry():
    s = Stream()
    s("PHASE2:\ns_barrier")
    s("s_and_b32 s3, s2, 7\ns_lshr_b32 s4, s2, 3")
    s(f"s_and_b32 s5, s3, 3\ns_lshl_b32 s5, s5, 3\ns_and_b32 s6, s4, 7\ns_add_u32 s{sMB}, s5, s6")
    s(f"s_lshr_b32 s5, s3, 2\ns_lshl_b32 s5, s5, 2\ns_lshr_b32 s6, s4, 3\ns_add_u32 s{sNB}, s5, s6")
    s(f"v_lshlrev_b32 v2, 2, v{vL}\nv_and_b32 v2, 31, v2\nv_add_u32 v2, {L_FLAG}, v2\nv_mov_b32 v3, 0\nds_write_b32 v2, v3")
    for d in (sWS, sWSI):
        for q in range(4): s(f"s_mov_b32 s{d+q}, s{20+q}")
    srd(s, sOUT, 82, S * D * 2)
    s.extend(tables())
    s("s_waitcnt vmcnt(0) lgkmcnt(0)\ns_barrier")
    stamp(s, 3)
    g = Stream()
    g(f"s_cmp_ge_u32 s{sNI}, 27\ns_cbranch_scc1 P2_ARRD")
    arrive_ops(g, sWS, vL, FL_H, sMI, 8, 10, sLEAD, sT1, 5, counted=False)
    g("s_branch P2_ARRX\nP2_ARRD:")
    arrive_ops(g, sWS, vL, FL_AT, None, 8, 7, sLEAD, sT1, 5, counted=False)
    g("P2_ARRX:")
    s.group(g)
    return s

def spin_global(s, name, voff, vexp, vval, soff, sleep=3):
    s(f"s_mov_b32 s{sT1}, 0\n{name}:")
    s.append(Op(f"buffer_load_dword v{vval}, v{voff}, s[{sWS}:{sWS+3}], s{soff} offen sc1", "raw"))
    s(f"s_add_u32 s{sT1}, s{sT1}, 1"); s.append(Op("s_waitcnt vmcnt(0)", "raw"))
    s(f"v_cmp_ne_u32 vcc, v{vexp}, v{vval}\ns_cmp_ge_u32 s{sT1}, 100000\ns_cbranch_scc1 {name}D\ns_cbranch_vccz {name}D\ns_sleep {sleep}\ns_branch {name}\n{name}D:")

def lds_signal(s, word, tmp=5):
    s(f"v_mov_b32 v{tmp}, {L_FLAG + 4*word}\nv_mov_b32 v{tmp+1}, 1\nds_write_b32 v{tmp}, v{tmp+1}")

def lds_wait(s, name, word, tmp=5):
    s(f"v_mov_b32 v{tmp}, {L_FLAG + 4*word}\ns_mov_b32 s{sT1}, 0\n{name}:")
    s.append(Op(f"ds_read_b32 v{tmp+1}, v{tmp}", "raw"))
    s(f"s_add_u32 s{sT1}, s{sT1}, 1"); s.append(Op("s_waitcnt lgkmcnt(0)", "raw"))
    s(f"v_readfirstlane_b32 s{sT2}, v{tmp+1}\ns_cmp_ge_u32 s{sT1}, 2000000\ns_cbranch_scc1 {name}D\ns_cmp_lg_u32 s{sT2}, 0\ns_cbranch_scc1 {name}D\ns_sleep 1\ns_branch {name}\n{name}D:")

TT = 176
def trig(s, dst_c, dst_s, src, scale):
    s(f"v_cvt_f32_u32 v9, {src}\nv_mul_f32 v9, {scale}, v9\nv_cos_f32 v{dst_c}, v9\nv_sin_f32 v{dst_s}, v9")

def tables():
    s = Stream()
    R2048, R64, R32 = f2h(1/2048), f2h(1/64), f2h(1/32)
    a, b, c, d = TT, TT + 8, TT + 16, TT + 32
    s(f"v_and_b32 v12, 31, v{vL}\nv_lshrrev_b32 v13, 5, v{vL}\nv_lshlrev_b32 v14, 4, v{vL}")
    s(f"s_lshl_b32 s{sT2}, s{sW}, 3\ns_lshl_b32 s{sT3}, s{sW}, 11\nv_add_u32 v15, s{sT3}, v14")
    s(f"v_lshl_add_u32 v16, v13, 2, s{sT2}")
    for r in range(4):
        s(f"v_add_u32 v17, {r}, v16\nv_mul_u32_u24 v17, v17, v12"); trig(s, a + r, a + 4 + r, "v17", R2048)
    s(f"ds_write_b128 v15, v[{a}:{a+3}] offset:{L_T1}\nds_write_b128 v15, v[{a+4}:{a+7}] offset:{L_T1 + 1024}")
    s(f"s_lshr_b32 s{sT2}, s{sW}, 2\ns_lshl_b32 s{sT2}, s{sT2}, 5\nv_add_u32 v18, s{sT2}, v12")
    s(f"s_and_b32 s{sT2}, s{sW}, 3\ns_lshl_b32 s{sT2}, s{sT2}, 3\nv_lshl_add_u32 v16, v13, 2, s{sT2}")
    for r in range(4):
        s(f"v_add_u32 v17, {r}, v16\nv_mul_u32_u24 v17, v17, v18"); trig(s, b + r, b + 4 + r, "v17", R2048)
    sc = f2h(1.0 / (640 * 2048))
    for r in range(8): s(f"v_mul_f32 v{b+r}, {sc}, v{b+r}")
    s(f"ds_write_b128 v15, v[{b}:{b+3}] offset:{L_T3}\nds_write_b128 v15, v[{b+4}:{b+7}] offset:{L_T3 + 1024}")
    def dft_frag(g, mask, scale):
        for j in range(8):
            g(f"v_add_u32 v17, {8*(j >> 2) + (j & 3)}, v16\nv_mul_u32_u24 v17, v17, v18\nv_and_b32 v17, {mask}, v17"); trig(g, c + j, c + 8 + j, "v17", scale)
        for jj in range(4):
            g(f"v_cvt_pk_bf16_f32 v{d+jj}, v{c+2*jj}, v{c+1+2*jj}\nv_cvt_pk_bf16_f32 v{d+8+jj}, v{c+8+2*jj}, v{c+9+2*jj}")
            g(f"v_xor_b32 v{d+4+jj}, 0x80008000, v{d+8+jj}")
    s(f"s_and_b32 s{sT2}, s{sW}, 3\ns_lshl_b32 s{sT2}, s{sT2}, 4\nv_lshl_add_u32 v16, v13, 2, s{sT2}")
    dft_frag(s, 63, R64)
    s(f"s_lshl_b32 s{sT3}, s{sW}, 10\ns_add_u32 s{sT3}, s{sT3}, {L_F64}\nv_add_u32 v15, s{sT3}, v14")
    s(f"ds_write_b128 v15, v[{d}:{d+3}]\nds_write_b128 v15, v[{d+4}:{d+7}] offset:8192\nds_write_b128 v15, v[{d+8}:{d+11}] offset:16384")
    s(f"s_cmp_lt_u32 s{sW}, 6\ns_cbranch_scc1 K2_NOF32")
    s(f"s_sub_u32 s{sT1}, s{sW}, 6\ns_lshl_b32 s{sT2}, s{sT1}, 4\nv_lshl_add_u32 v16, v13, 2, s{sT2}\nv_mov_b32 v18, v12")
    dft_frag(s, 31, R32)
    s(f"s_lshl_b32 s{sT3}, s{sT1}, 10\ns_add_u32 s{sT3}, s{sT3}, {L_F32}\nv_add_u32 v15, s{sT3}, v14")
    s(f"ds_write_b128 v15, v[{d}:{d+3}]\nds_write_b128 v15, v[{d+4}:{d+7}] offset:2048\nds_write_b128 v15, v[{d+8}:{d+11}] offset:4096")
    s(f"K2_NOF32:")
    return s

SETS = [20, 56, 92, 128]
ACC = 176
XR, EA, EG = 128, 164, 169
NH = 14

def gemm_path():
    s = Stream()
    s(f"v_lshlrev_b32 v2, 4, v{vL}")
    s(f"s_mul_i32 s{sT0}, s{sW}, 14\ns_cmp_eq_u32 s{sW}, 3\ns_cselect_b32 s{sT1}, 1, 0\ns_sub_u32 s{sT0}, s{sT0}, s{sT1}")
    s(f"s_lshl_b32 s{sT1}, s{sMB}, 2\ns_mul_i32 s{sT1}, s{sT1}, 54\ns_add_u32 s{sT1}, s{sT1}, s{sT0}\ns_lshl_b32 s{sT1}, s{sT1}, 10\ns_add_u32 s{sH}, s{sT1}, {WS_H}")
    for st in range(1, 4): s(f"s_add_u32 s{sH+st}, s{sH}, {st*54*1024}")
    s(f"s_mul_i32 s{sT1}, s{sNB}, {5*74}\ns_add_u32 s{sT1}, s{sT1}, s{sT0}\ns_lshl_b32 s{sT1}, s{sT1}, 10\ns_add_u32 s{sB}, s{sT1}, {WS_WB}")
    for dt in range(1, 5): s(f"s_add_u32 s{sB+dt}, s{sB}, {dt*74*1024}")
    def loads(u, which="hb"):
        st0 = SETS[u % 4]
        g = Stream()
        if u < 3:
            for kind in which:
                for i in range(4 if kind == "h" else 5):
                    r = st0 + 4 * i if kind == "h" else st0 + 16 + 4 * i
                    so = sH + i if kind == "h" else sB + i
                    g(f"buffer_load_dwordx4 v[{r}:{r+3}], v2, s[{sWK}:{sWK+3}], s{so} offen offset:{u*1024}", tag=f"ld{u}")
            if u == 2 and which == "h": g(f"s_add_u32 s{sWK}, s{sWK}, 3072\ns_addc_u32 s{sWK+1}, s{sWK+1}, 0")
            return g
        if u == NH - 1:
            g(f"s_cmp_ge_u32 s{sW}, 2\ns_cselect_b32 s{sWK+2}, 0, s{sWK+2}")
        if u < NH:
            order = [("h", 0), ("b", 0), ("h", 1), ("b", 1), ("h", 2), ("b", 2), ("h", 3), ("b", 3), ("b", 4)]
            for kind, i in order:
                r = st0 + 4 * i if kind == "h" else st0 + 16 + 4 * i
                so = sH + i if kind == "h" else sB + i
                g(f"buffer_load_dwordx4 v[{r}:{r+3}], v2, s[{sWK}:{sWK+3}], s{so} offen", tag=f"ld{u}")
            g(f"s_add_u32 s{sWK}, s{sWK}, 1024\ns_addc_u32 s{sWK+1}, s{sWK+1}, 0")
        else:
            z = u - NH
            if z == 0:
                g(f"s_mul_i32 s{sT1}, s{sNB}, {5*74}\ns_mul_i32 s{sT0}, s{sW}, 5\ns_add_u32 s{sT1}, s{sT1}, s{sT0}\ns_add_u32 s{sT1}, s{sT1}, 54")
                g(f"s_lshl_b32 s{sT1}, s{sT1}, 10\ns_add_u32 s{sB}, s{sT1}, {WS_WB}")
                for dt in range(1, 5): g(f"s_add_u32 s{sB+dt}, s{sB}, {dt*74*1024}")
            if z == 4:
                for dt in range(5): g(f"s_add_u32 s{sB+dt}, s{sB+dt}, 4096")
            for dt in range(5):
                r = st0 + 16 + 4 * dt
                g(f"buffer_load_dwordx4 v[{r}:{r+3}], v2, s[{sWS}:{sWS+3}], s{sB+dt} offen offset:{(z & 3)*1024}", tag=f"ld{u}")
        return g
    def mfmas(u):
        st0 = SETS[u % 4]
        g = Stream()
        for st in range(4):
            for dt in range(5):
                acc = ACC + 4 * (5 * st + dt)
                c = "0" if u == 0 else f"v[{acc}:{acc+3}]"
                g(f"v_mfma_f32_16x16x32_bf16 v[{acc}:{acc+3}], v[{st0+16+4*dt}:{st0+19+4*dt}], v[{st0+4*st}:{st0+4*st+3}], {c}")
        return g
    g = Stream()
    g(f"s_cmp_lg_u32 s{sW}, 0\ns_cbranch_scc1 P2_GW1")
    g(f"v_and_b32 v3, 7, v{vL}\nv_lshlrev_b32 v3, 7, v3\nv_mov_b32 v4, 27\ns_and_b32 s{sT3}, s2, 7\ns_lshl_b32 s{sT3}, s{sT3}, 10\ns_add_u32 s43, s{sT3}, {WS_FLAG + FL_WD}")
    spin_global(g, "P2_PWD", 3, 4, 5, 43)
    lds_signal(g, 4)
    g("s_branch P2_GW2\nP2_GW1:")
    lds_wait(g, "P2_LWD", 4)
    g("P2_GW2:")
    s.extend(g)
    for u in range(3): s.extend(loads(u, "b"))
    g = Stream()
    g(f"s_cmp_lg_u32 s{sW}, 0\ns_cbranch_scc1 P2_GW3")
    g(f"s_lshr_b32 s{sT3}, s{sMB}, 2\ns_lshl_b32 s{sT3}, s{sT3}, 7\ns_and_b32 s43, s2, 7\ns_lshl_b32 s43, s43, 10\ns_add_u32 s43, s43, s{sT3}\ns_add_u32 s43, s43, {WS_FLAG + FL_H}")
    g("v_mov_b32 v3, 0\nv_mov_b32 v4, 27")
    spin_global(g, "P2_PH", 3, 4, 5, 43)
    lds_signal(g, 5)
    g("s_branch P2_GW4\nP2_GW3:")
    lds_wait(g, "P2_LH", 5)
    g("P2_GW4:")
    s.extend(g)
    stamp(s, 4)
    for u in range(3): s.extend(loads(u, "h"))
    def epi_addr():
        g = Stream()
        g(f"s_lshl_b32 s{sT2}, s{sW}, 4")
        for i in range(5):
            g(f"v_add_u32 v6, {64*i}, v{vL}\nv_mul_u32_u24 v7, 3277, v6\nv_lshrrev_b32 v7, 16, v7")
            g(f"v_mul_u32_u24 v8, 20, v7\nv_sub_u32 v8, v6, v8\nv_add_u32 v7, s{sT2}, v7")
            g(f"v_mul_u32_u24 v9, 336, v7\nv_lshl_add_u32 v9, v8, 4, v9\nv_add_u32 v{EA+i}, {L_GEMM}, v9")
            g(f"v_mul_u32_u24 v9, 1280, v7\nv_lshl_add_u32 v{EG+i}, v8, 3, v9")
        g(f"s_lshl_b32 s{sT2}, s{sMB}, 6\ns_mul_i32 s{sT2}, s{sT2}, 1280\ns_mul_i32 s{sT3}, s{sNB}, 160\ns_add_u32 s58, s{sT2}, s{sT3}")
        return g
    def z_addr():
        g = Stream()
        g(f"v_lshrrev_b32 v6, 3, v{vL}\nv_lshlrev_b32 v6, 12, v6\nv_bfe_u32 v7, v{vL}, 4, 1\nv_lshlrev_b32 v7, 1, v7\nv_and_b32 v8, 7, v{vL}\nv_xor_b32 v7, v7, v8")
        g(f"v_lshl_add_u32 v16, v7, 4, v6\nv_xor_b32 v17, 64, v16")
        g(f"s_mul_i32 s53, s{sW}, {160*4096}\ns_lshl_b32 s{sT3}, s{sMB}, 7\ns_add_u32 s53, s53, s{sT3}\ns_add_u32 s53, s53, {WS_ZT}")
        g(f"s_mul_i32 s59, s{sW}, {RED}\ns_add_u32 s59, s59, {L_GEMM}")
        g(f"v_and_b32 v8, 15, v{vL}\nv_lshrrev_b32 v9, 4, v{vL}\nv_lshrrev_b32 v10, 2, v8\nv_lshl_add_u32 v10, v9, 3, v10")
        g(f"v_bfe_u32 v11, v{vL}, 3, 1\nv_and_b32 v12, 1, v9\nv_lshl_or_b32 v11, v12, 1, v11")
        g(f"v_lshlrev_b32 v11, 5, v11\nv_lshl_add_u32 v10, v10, 7, v11\nv_and_b32 v12, 3, v8\nv_lshl_add_u32 v10, v12, 3, v10\nv_add_u32 v12, s59, v10")
        for st in range(1, 4): g(f"v_xor_b32 v{12+st}, {32*st}, v12")
        return g
    def poll_issue():
        g = Stream()
        g(f"v_and_b32 v3, 7, v{vL}\nv_mov_b32 v4, 40")
        g(f"v_lshlrev_b32 v3, 7, v3\ns_and_b32 s{sT3}, s2, 31\ns_lshl_b32 s{sT3}, s{sT3}, 10\ns_add_u32 s43, s{sT3}, {WS_FLAG}")
        g(f"s_cmp_eq_u32 s{sW}, 0\ns_cselect_b32 s{sT3}, s43, 0x40000000")
        g(f"buffer_load_dword v5, v3, s[{sWS}:{sWS+3}], s{sT3} offen sc1", tag="poll")
        return g
    extra = {5: epi_addr(), 7: z_addr(), 12: poll_issue()}
    for u in range(NH):
        s.wait_vm(f"ld{u}")
        s.extend(merge(mfmas(u), [loads(u + 3), extra.get(u, Stream())], front=False))
    stamp(s, 5)
    s.extend(loads(NH + 3))
    g = Stream()
    g(f"s_cmp_lg_u32 s{sW}, 0\ns_cbranch_scc1 K2_SPUN")
    g.wait_vm("poll")
    g(f"v_cmp_ne_u32 vcc, v4, v5\ns_cbranch_vccz K2_SPUN\ns_mov_b32 s{sT1}, 0\nK2_SPINL:\ns_sleep 4")
    g.append(Op(f"buffer_load_dword v5, v3, s[{sWS}:{sWS+3}], s43 offen sc1", "raw"))
    g(f"s_add_u32 s{sT1}, s{sT1}, 1"); g.append(Op("s_waitcnt vmcnt(0)", "raw"))
    g(f"v_cmp_ne_u32 vcc, v4, v5\ns_cmp_ge_u32 s{sT1}, 100000\ns_cbranch_scc1 K2_SPUN\ns_cbranch_vccnz K2_SPINL\nK2_SPUN:")
    s.group(g)
    s("s_barrier")
    stamp(s, 6)
    for i in range(20):
        s(f"s_add_u32 m0, s59, {i*1024}")
        s(f"buffer_load_dwordx4 v{16 + (i & 1)}, s[{sWS}:{sWS+3}], s53 offen sc1 lds", tag=f"z{i//4}")
        if i < 19: s(f"s_add_u32 s53, s53, {8*4096}")
    def zreads(z):
        g = Stream(); base = SETS[(NH + z) % 4]
        for st in range(4):
            for jh in range(2):
                g(f"ds_read_b64_tr_b16 v[{base+4*st+2*jh}:{base+4*st+2*jh+1}], v{12+st} offset:{z*4096 + jh*512}", tag=f"zr{z}")
        return g
    s.wait_vm("z0"); s.extend(zreads(0))
    for z in range(5):
        nxt = Stream()
        if z < 4:
            nxt.wait_vm(f"z{z+1}"); nxt.extend(zreads(z + 1))
        more = Stream()
        if z == 1: more.extend(loads(NH + 4))
        if z == 2:
            for i in range(5):
                more(f"buffer_load_dwordx2 v[{XR+2*i}:{XR+1+2*i}], v{EG+i}, s[{sX}:{sX+3}], s58 offen", tag="xld")
        s.wait_ds(f"zr{z}"); s.wait_vm(f"ld{NH+z}")
        s.extend(merge(mfmas(NH + z), [nxt, more]))
    s(f"v_and_b32 v8, 15, v{vL}\nv_lshrrev_b32 v9, 4, v{vL}\nv_mul_u32_u24 v10, 336, v8\nv_lshl_add_u32 v10, v9, 4, v10\nv_add_u32 v10, s59, v10")
    for st in range(4):
        for dt in range(5):
            acc = ACC + 4 * (5 * st + dt)
            s(f"ds_write_b128 v10, v[{acc}:{acc+3}] offset:{st*16*336 + dt*64}", tag="rw")
    s.wait_ds("all"); s("s_barrier")
    RB = 20
    for i in range(5):
        for p in range(4):
            r = RB + 16 * i + 4 * p
            s(f"ds_read_b128 v[{r}:{r+3}], v{EA+i} offset:{p*RED}", tag=f"rr{i}")
    s.wait_vm("xld")
    for i in range(5):
        r = RB + 16 * i
        s.wait_ds(f"rr{i}")
        for c in range(4):
            s(f"v_add_f32 v{r+c}, v{r+c}, v{r+4+c}\nv_add_f32 v{r+8+c}, v{r+8+c}, v{r+12+c}\nv_add_f32 v{r+c}, v{r+c}, v{r+8+c}")
        x0, x1 = XR + 2 * i, XR + 2 * i + 1
        s(f"v_lshlrev_b32 v3, 16, v{x0}\nv_and_b32 v4, 0xffff0000, v{x0}\nv_lshlrev_b32 v5, 16, v{x1}\nv_and_b32 v6, 0xffff0000, v{x1}")
        s(f"v_add_f32 v{r}, v{r}, v3\nv_add_f32 v{r+1}, v{r+1}, v4\nv_add_f32 v{r+2}, v{r+2}, v5\nv_add_f32 v{r+3}, v{r+3}, v6")
        s(f"v_cvt_pk_bf16_f32 v{r+4}, v{r}, v{r+1}\nv_cvt_pk_bf16_f32 v{r+5}, v{r+2}, v{r+3}")
        s(f"buffer_store_dwordx2 v[{r+4}:{r+5}], v{EG+i}, s[{sOUT}:{sOUT+3}], s58 offen")
    stamp_out(s, 8, True)
    s("s_endpgm")
    return s

XO, XP = 20, 36
WR = 52
FR, FI, FN = 84, 92, 100
TW = 108
AR, AI = 128, 144
FS = 192
def xo(part, t): return XO + 4 * (2 * part + t)
def xp(part, t): return XP + 4 * (2 * part + t)

def pack(s, g):
    t = g >> 1; o = 2 * (g & 1)
    s(f"v_cvt_pk_bf16_f32 v{xo(0,t)+o}, v224, v225\nv_cvt_pk_bf16_f32 v{xo(0,t)+o+1}, v226, v227")
    s(f"v_cvt_pk_bf16_f32 v{xo(1,t)+o}, v228, v229\nv_cvt_pk_bf16_f32 v{xo(1,t)+o+1}, v230, v231")

def cmul_pass(s, name, sign):
    table = {"t1": L_T1, "t3": L_T3}[name]
    def rd(g):
        b = TW + 8 * (g & 1)
        s(f"ds_read_b128 v[{b}:{b+3}], v10 offset:{table + g*2048}", tag=f"{name}{g}")
        s(f"ds_read_b128 v[{b+4}:{b+7}], v10 offset:{table + g*2048 + 1024}", tag=f"{name}{g}")
    rd(0)
    for g in range(4):
        if g < 3: rd(g + 1)
        s.wait_ds(f"{name}{g}")
        b = TW + 8 * (g & 1)
        for r in range(4):
            re, im, c, sn, t1, t2 = AR + 4*g + r, AI + 4*g + r, b + r, b + 4 + r, 224 + r, 228 + r
            s(f"v_mul_f32 v{t1}, v{re}, v{c}\nv_mul_f32 v{t2}, v{im}, v{c}")
            if sign < 0: s(f"v_fmac_f32 v{t1}, v{im}, v{sn}\nv_fma_f32 v{t2}, -v{re}, v{sn}, v{t2}")
            else: s(f"v_fma_f32 v{t1}, -v{im}, v{sn}, v{t1}\nv_fmac_f32 v{t2}, v{re}, v{sn}")
        pack(s, g)

def exchange(s, n):
    for i in range(4):
        s(f"ds_write_b128 v11, v[{XO+4*i}:{XO+4*i+3}] offset:{(n-1)*4096 + i*1024}")
    s(f"v_mov_b32 v5, {n}\ns_waitcnt lgkmcnt(0)\nds_write_b32 v15, v5")
    s(f"s_mov_b32 s{sT1}, 0\nK2_EX{n}:\nds_read_b32 v6, v16\ns_add_u32 s{sT1}, s{sT1}, 1\ns_waitcnt lgkmcnt(0)")
    s(f"v_readfirstlane_b32 s{sT2}, v6\ns_cmp_ge_u32 s{sT1}, 1000000\ns_cbranch_scc1 K2_EXD{n}\ns_cmp_lt_u32 s{sT2}, {n}\ns_cbranch_scc1 K2_EX{n}\nK2_EXD{n}:")
    for i in range(4):
        s(f"ds_read_b128 v[{XP+4*i}:{XP+4*i+3}], v12 offset:{(n-1)*4096 + i*1024}", tag=f"ex{n}")

def M32(s, d, a, b, first):
    c = "0" if first else f"v[{d}:{d+15}]"
    s(f"v_mfma_f32_32x32x16_bf16 v[{d}:{d+15}], v[{a}:{a+3}], v[{b}:{b+3}], {c}")

def col_path():
    s = Stream()
    s(f"s_and_b32 s52, s{sW}, 1\ns_add_u32 s44, s2, 1\ns_cmp_lt_u32 s{sW}, 6\ns_cbranch_scc1 P2_COLN")
    s(f"s_lshl_b32 s{sT0}, s{sNI}, 3\ns_add_u32 s{sT0}, s{sT0}, s{sMI}")
    s(f"s_cmp_lt_u32 s{sT0}, 192\ns_cbranch_scc1 K2_END")
    s(f"s_add_u32 s44, s{sT0}, 105\ns_cmp_ge_u32 s{sT0}, 216\ns_cselect_b32 s{sT1}, 64, 0\ns_sub_u32 s44, s44, s{sT1}")
    s("P2_COLN:")
    s("s_cmp_eq_u32 s44, 320\ns_cselect_b32 s45, 1, 0\ns_cselect_b32 s46, 0, s44")
    s(f"s_cmp_eq_u32 s46, 0\ns_cselect_b32 s{sWSI+2}, 0, s{sWSI+2}")
    s(f"s_lshl_b32 s47, s46, 13\ns_add_u32 s47, s47, {WS_AT}\ns_lshl_b32 s{sT0}, s52, 11\ns_add_u32 s47, s47, s{sT0}")
    s(f"s_lshl_b32 s{sT0}, s45, 12\ns_add_u32 s48, s47, s{sT0}\ns_add_u32 s47, s47, 4096")
    s(f"s_lshl_b32 s49, s44, 13\ns_add_u32 s49, s49, {WS_WT}\ns_lshl_b32 s{sT0}, s52, 12\ns_add_u32 s49, s49, s{sT0}")
    s(f"s_lshl_b32 s50, s46, 1\ns_add_u32 s50, s50, s45\ns_lshl_b32 s50, s50, 12\ns_add_u32 s50, s50, {WS_ZT}")
    s(f"s_lshl_b32 s{sT0}, s52, 6\ns_add_u32 s50, s50, s{sT0}\ns_add_u32 s51, s50, 4096")
    s(f"v_lshlrev_b32 v4, 4, v{vL}")
    g = Stream()
    g(f"s_cmp_lg_u32 s{sW}, 4\ns_cbranch_scc1 P2_CW1")
    g(f"s_and_b32 s43, s2, 7\ns_lshl_b32 s43, s43, 7\ns_add_u32 s43, s43, {WS_FLAG + FL_AT}\nv_mov_b32 v3, 0\nv_mov_b32 v8, 40")
    spin_global(g, "P2_PAT", 3, 8, 9, 43)
    lds_wait(g, "P2_LWD4", 4)
    lds_signal(g, 6)
    g("s_branch P2_CW2\nP2_CW1:")
    lds_wait(g, "P2_LAT", 6)
    g("P2_CW2:")
    s.extend(g)
    stamp(s, 4)
    if OPT.get("prio", 1): s("s_setprio 3")
    for t in range(2):
        s(f"buffer_load_dwordx4 v[{xo(0,t)}:{xo(0,t)+3}], v4, s[{sWS}:{sWS+3}], s48 offen offset:{t*1024} sc1", tag="in")
        s(f"buffer_load_dwordx4 v[{xo(1,t)}:{xo(1,t)+3}], v4, s[{sWSI}:{sWSI+3}], s47 offen offset:{t*1024} sc1", tag="in")
    for g_ in range(4):
        s(f"buffer_load_dwordx4 v[{WR+4*g_}:{WR+4*g_+3}], v4, s[{sWS}:{sWS+3}], s49 offen offset:{g_*1024} sc1", tag="w")
    s(f"s_lshl_b32 s{sT0}, s52, 13\nv_add_u32 v10, s{sT0}, v4")
    s(f"s_sub_u32 s{sT0}, s{sW}, 4\ns_lshl_b32 s{sT1}, s{sT0}, 13\ns_add_u32 s{sT1}, s{sT1}, {L_EX}\nv_add_u32 v11, s{sT1}, v4")
    s(f"s_xor_b32 s{sT2}, s{sT0}, 1\ns_lshl_b32 s{sT1}, s{sT2}, 13\ns_add_u32 s{sT1}, s{sT1}, {L_EX}\nv_add_u32 v12, s{sT1}, v4")
    s(f"s_lshl_b32 s{sT0}, s{sT0}, 2\ns_add_u32 s{sT0}, s{sT0}, {L_FLAG}\nv_mov_b32 v15, s{sT0}\ns_lshl_b32 s{sT2}, s{sT2}, 2\ns_add_u32 s{sT2}, s{sT2}, {L_FLAG}\nv_mov_b32 v16, s{sT2}")
    s(f"s_mul_i32 s{sT0}, s52, 6144\ns_add_u32 s{sT0}, s{sT0}, {L_F64}\nv_add_u32 v13, s{sT0}, v4")
    s(f"s_lshl_b32 s{sT0}, s52, 11\ns_add_u32 s{sT0}, s{sT0}, {L_F64 + 2048}\nv_add_u32 v14, s{sT0}, v4")
    for t in range(2):
        s(f"ds_read_b128 v[{FR+4*t}:{FR+4*t+3}], v4 offset:{L_F32 + t*1024}", tag="f32")
        s(f"ds_read_b128 v[{FI+4*t}:{FI+4*t+3}], v4 offset:{L_F32 + 2048 + t*1024}", tag="f32")
        s(f"ds_read_b128 v[{FN+4*t}:{FN+4*t+3}], v4 offset:{L_F32 + 4096 + t*1024}", tag="f32")
    s.wait_ds("f32"); s.wait_vm("in")
    for t in range(2):
        M32(s, AR, xo(0,t), FR+4*t, t == 0); M32(s, AI, xo(0,t), FI+4*t, t == 0)
        M32(s, AR, xo(1,t), FN+4*t, False); M32(s, AI, xo(1,t), FR+4*t, False)
    def f64rd(k, tag):
        b = FS + 12 * (k & 1); va = 13 if k < 2 else 14; o = (k & 1) * 1024
        s(f"ds_read_b128 v[{b}:{b+3}], v{va} offset:{o}", tag=tag)
        s(f"ds_read_b128 v[{b+4}:{b+7}], v{va} offset:{o + 8192}", tag=tag)
        s(f"ds_read_b128 v[{b+8}:{b+11}], v{va} offset:{o + 16384}", tag=tag)
    cmul_pass(s, "t1", -1)
    f64rd(0, "a0")
    exchange(s, 1)
    for k in range(4):
        if k < 3: f64rd(k + 1, f"a{k+1}")
        s.wait_ds(f"a{k}")
        if k == 2: s.wait_ds("ex1")
        b = FS + 12 * (k & 1); x = xo if k < 2 else xp; t = k & 1
        M32(s, AR, b, x(0,t), k == 0); M32(s, AI, b+4, x(0,t), k == 0)
        M32(s, AR, b+8, x(1,t), False); M32(s, AI, b, x(1,t), False)
    s.wait_vm("w")
    for g in range(4):
        for r in range(4):
            re, im, w, t1, t2 = AR + 4*g + r, AI + 4*g + r, WR + 4*g + r, 224 + r, 228 + r
            s(f"v_lshlrev_b32 v6, 16, v{w}\nv_and_b32 v7, 0xffff0000, v{w}")
            s(f"v_mul_f32 v{t1}, v{re}, v6\nv_mul_f32 v{t2}, v{im}, v6\nv_fma_f32 v{t1}, -v{im}, v7, v{t1}\nv_fmac_f32 v{t2}, v{re}, v7")
        pack(s, g)
    stamp(s, 5)
    f64rd(0, "b0")
    exchange(s, 2)
    for k in range(4):
        if k < 3: f64rd(k + 1, f"b{k+1}")
        s.wait_ds(f"b{k}")
        if k == 2: s.wait_ds("ex2")
        b = FS + 12 * (k & 1); x = xo if k < 2 else xp; t = k & 1
        M32(s, AR, x(0,t), b, k == 0); M32(s, AI, x(1,t), b, k == 0)
        M32(s, AR, x(1,t), b+4, False); M32(s, AI, x(0,t), b+8, False)
    cmul_pass(s, "t3", +1)
    for t in range(2):
        M32(s, AR, xo(0,t), FR+4*t, t == 0); M32(s, AI, xo(1,t), FR+4*t, t == 0)
        M32(s, AR, xo(1,t), FI+4*t, False); M32(s, AI, xo(0,t), FN+4*t, False)
    s(f"s_sub_u32 s{sT0}, s{sW}, 4\ns_mul_i32 s{sT0}, s{sT0}, 5120\ns_add_u32 s{sT0}, s{sT0}, {L_BNC}")
    s(f"v_and_b32 v6, 31, v{vL}\nv_mul_u32_u24 v6, 80, v6\nv_lshrrev_b32 v7, 5, v{vL}\nv_lshl_add_u32 v6, v7, 3, v6\nv_add_u32 v6, s{sT0}, v6")
    s(f"v_lshrrev_b32 v7, 2, v{vL}\nv_mul_u32_u24 v8, 80, v7\nv_and_b32 v9, 3, v{vL}\nv_lshl_add_u32 v8, v9, 4, v8\nv_add_u32 v8, s{sT0}, v8")
    s(f"v_lshlrev_b32 v7, 7, v7\nv_lshl_add_u32 v7, v9, 4, v7")
    for part, A0 in ((0, AR), (1, AI)):
        for g in range(4):
            a = A0 + 4*g; o = 224 + 2 * (g & 1) + 4 * part
            s(f"v_cvt_pk_bf16_f32 v{o}, v{a}, v{a+1}\nv_cvt_pk_bf16_f32 v{o+1}, v{a+2}, v{a+3}")
            s(f"ds_write_b64 v6, v[{o}:{o+1}] offset:{part*2560 + 16*g}", tag="ow")
    s.wait_ds("ow")
    for part in range(2):
        for i in range(2):
            r = XO + 8*part + 4*i
            s(f"ds_read_b128 v[{r}:{r+3}], v8 offset:{part*2560 + i*16*80}", tag=f"or{part}{i}")
    for part, so, sr in ((0, 50, sWS), (1, 51, sWSI)):
        for i in range(2):
            r = XO + 8*part + 4*i
            s.wait_ds(f"or{part}{i}")
            s(f"buffer_store_dwordx4 v[{r}:{r+3}], v7, s[{sr}:{sr+3}], s{so} offen offset:{i*16*128} sc1")
    stamp(s, 6)
    s("s_waitcnt vmcnt(0)")
    s(f"v_mov_b32 v5, 3\nds_write_b32 v15, v5\ns_cmp_eq_u32 s52, 1\ns_cbranch_scc1 K2_COLX")
    s(f"s_mov_b32 s{sT1}, 0\nK2_EX3:\nds_read_b32 v6, v16\ns_add_u32 s{sT1}, s{sT1}, 1\ns_waitcnt lgkmcnt(0)")
    s(f"v_readfirstlane_b32 s{sT2}, v6\ns_cmp_ge_u32 s{sT1}, 1000000\ns_cbranch_scc1 K2_EXD3\ns_cmp_lt_u32 s{sT2}, 3\ns_cbranch_scc1 K2_EX3\nK2_EXD3:")
    s(f"s_and_b32 s{sT0}, s44, 7\ns_lshl_b32 s{sT0}, s{sT0}, 7\ns_add_u32 s{sT0}, s{sT0}, {WS_FLAG}")
    s(f"v_mov_b32 v5, 1\nv_lshlrev_b32 v6, 10, v{vL}\ns_mov_b32 exec_hi, 0")
    s(f"buffer_atomic_add v5, v6, s[{sWS}:{sWS+3}], s{sT0} offen")
    s("s_mov_b64 exec, -1\nK2_COLX:")
    stamp_out(s, 8)
    s("s_endpgm")
    return s

def phase2():
    h = entry()
    h(f"s_cmp_ge_u32 s{sW}, 4\ns_cbranch_scc1 K2_COL")
    g = Stream(); g.extend(h); g.extend(gemm_path())
    lines = finish(g)
    c = Stream(); c("K2_COL:"); c.extend(col_path())
    lines += finish(c)
    lines += ["K2_END:", "s_endpgm"]
    return lines
```
